```python
import torch

def _softmax(x, axis=-1):
    return torch.softmax(x, dim=axis)

def _gelu(x):
    return torch.nn.functional.gelu(x, approximate='tanh')

def _silu(x):
    return torch.nn.functional.silu(x)

def _sigmoid(x):
    return torch.sigmoid(x)

def _layernorm(x, axis=-1, eps=1e-05):
    m = x.mean(dim=axis, keepdim=True)
    v = x.var(dim=axis, keepdim=True, unbiased=False)
    return (x - m) / torch.sqrt(v + eps)

def _scatter_add(tgt, idx, src, axis=0):
    return tgt.clone().index_add_(axis, idx, src)

def _segment_sum(src, seg, n):
    out = torch.zeros((n,) + src.shape[1:], dtype=src.dtype)
    return out.index_add_(0, seg, src)

def _pad(x, pw):
    flat = tuple((v for pair in reversed(pw) for v in pair))
    return torch.nn.functional.pad(x, flat)
kernel_name = 'standalone__video_videomae__vision'

def setup_inputs():

    _w = lambda a: (lambda t: t.to(torch.bfloat16) if t.is_floating_point() else t)(torch.as_tensor(a))
    T = 4
    N = 384
    C = max(384 // 4 * 4, 8)
    sc = C ** (-0.5)
    return {'x': _w((lambda *s: torch.randn(*s, dtype=torch.bfloat16) * 1.6)(1, T, N, C)), 'w_qkv_t': _w((lambda *s: torch.randn(*s, dtype=torch.bfloat16) * 1.6)(C, 3 * C) * sc), 'w_proj_t': _w((lambda *s: torch.randn(*s, dtype=torch.bfloat16) * 1.6)(C, C) * sc), 'w_qkv_s': _w((lambda *s: torch.randn(*s, dtype=torch.bfloat16) * 1.6)(C, 3 * C) * sc), 'w_proj_s': _w((lambda *s: torch.randn(*s, dtype=torch.bfloat16) * 3.2)(C, C) * sc), 'w1': _w((lambda *s: torch.randn(*s, dtype=torch.bfloat16) * 3.2)(C, 4 * C) * sc), 'w2': _w((lambda *s: torch.randn(*s, dtype=torch.bfloat16) * 0.8)(4 * C, C) * sc)}

def reference(x, w_qkv_t, w_proj_t, w_qkv_s, w_proj_s, w1, w2):
    B, T, N, C = x.shape
    Hd = 4
    D = C // Hd
    scale = D ** (-0.5)
    h = _layernorm(x, axis=-1)
    qkv = torch.einsum('btnc,ce->btne', h, w_qkv_t).reshape(B, T, N, 3, Hd, D)
    q = qkv[:, :, :, 0, :, :].clone()
    k = qkv[:, :, :, 1, :, :].clone()
    v = qkv[:, :, :, 2, :, :].clone()
    a = torch.einsum('btnhd,bsnhd->bnhts', q, k) * scale
    a = _softmax(a, axis=-1)
    o = torch.einsum('bnhts,bsnhd->btnhd', a, v).reshape(B, T, N, C)
    x = x + torch.einsum('btnc,ce->btne', o, w_proj_t)
    h = _layernorm(x, axis=-1)
    qkv = torch.einsum('btnc,ce->btne', h, w_qkv_s).reshape(B, T, N, 3, Hd, D)
    q = qkv[:, :, :, 0, :, :].clone()
    k = qkv[:, :, :, 1, :, :].clone()
    v = qkv[:, :, :, 2, :, :].clone()
    a = torch.einsum('btnhd,btmhd->bthnm', q, k) * scale
    a = _softmax(a, axis=-1)
    o = torch.einsum('bthnm,btmhd->btnhd', a, v).reshape(B, T, N, C)
    x = x + torch.einsum('btnc,ce->btne', o, w_proj_s)
    h = _layernorm(x, axis=-1)
    return x + _gelu(h @ w1) @ w2
```

```python
import re
def regs(tok):
    tok = tok.strip()
    tok = re.sub(r'^(-|abs\(|\|)+', '', tok).rstrip(')|')
    m = re.match(r'^([vsa])\[(\d+):(\d+)\]$', tok)
    if m: return [(m.group(1), i) for i in range(int(m.group(2)), int(m.group(3)) + 1)]
    m = re.match(r'^([vsa])(\d+)$', tok)
    if m: return [(m.group(1), int(m.group(2)))]
    if tok == 'vcc': return [('s', 106), ('s', 107)]
    if tok == 'exec': return [('s', 126), ('s', 127)]
    return []
TRANS = ('v_exp_f32', 'v_log_f32', 'v_rcp_f32', 'v_rsq_f32', 'v_sqrt_f32', 'v_sin_f32', 'v_cos_f32')
class Ins:
    def __init__(s, text):
        s.text = text
        t = text.split(';')[0].strip()
        p = t.split(None, 1)
        s.op = p[0]
        args = p[1] if len(p) > 1 else ''
        ops = [a.strip() for a in args.split(',')]
        ops = [o.split()[0] if o else o for o in ops]
        s.dpp = ('quad_perm' in t or 'row_' in t or 'wave_' in t)
        op = s.op
        s.mfma = op.startswith('v_mfma')
        s.valu = op.startswith('v_') and not s.mfma
        s.vmem = op.startswith('buffer_') or op.startswith('global_')
        s.ds = op.startswith('ds_')
        s.trans = op.replace('_e32', '').replace('_e64', '') in TRANS
        s.w, s.r, s.srcc, s.wide_store = [], [], [], []
        if s.mfma:
            s.w = regs(ops[0]); s.r = regs(ops[1]) + regs(ops[2]); s.srcc = regs(ops[3])
            s.passes = 8 if ('32x32' in op or 'x4_f32' in op) else 4
        elif s.valu:
            if 'swap' in op:
                s.w = regs(ops[0]) + regs(ops[1]); s.r = list(s.w)
            else:
                s.w = regs(ops[0]); rest = ops[1:]
                if '_co_' in op: s.w += regs(ops[1]); rest = ops[2:]
                for o in rest: s.r += regs(o)
                if op.startswith('v_fmac') or op.startswith('v_pk_fmac') or s.dpp: s.r += regs(ops[0])
                if op.startswith('v_cmpx'): s.w += regs('exec')
        elif s.vmem:
            if 'store' in op or 'atomic' in op:
                for o in ops: s.r += regs(o)
                if 'x3' in op or 'x4' in op: s.wide_store = regs(ops[0]) if op.startswith('buffer') else regs(ops[1])
                if 'atomic' in op and ' sc0' in t: s.w = regs(ops[0])
            else:
                s.w = regs(ops[0])
                for o in ops[1:]: s.r += regs(o)
        elif s.ds:
            if 'write' in op or 'add' in op:
                for o in ops: s.r += regs(o)
            else:
                s.w = regs(ops[0])
                for o in ops[1:]: s.r += regs(o)
        s.states = 1
        if op == 's_nop': s.states = int(ops[0], 0) + 1
def need(p, c):
    n = 0
    pw, cr, cw = set(p.w), set(c.r), set(c.w)
    vw = {x for x in pw if x[0] != 's'}; sw = {x for x in pw if x[0] == 's'}
    if p.valu:
        if c.mfma and vw & (cr | set(c.srcc)): n = max(n, 2)
        if c.valu and (c.dpp or 'permlane' in c.op) and vw & cr: n = max(n, 2)
        if c.valu and ('readlane' in c.op or 'readfirstlane' in c.op) and vw & cr: n = max(n, 1)
        if p.trans and c.valu and vw & cr: n = max(n, 1)
        if sw & cr:
            if c.vmem: n = max(n, 5)
            elif c.valu: n = max(n, 4 if 'lane' in c.op else 2)
        if ('s', 126) in pw and (c.mfma or c.valu): n = max(n, 5)
    if p.mfma:
        big = {4: 8, 8: 12}[p.passes]
        if c.mfma:
            if pw & cr: n = max(n, big)
            sc = set(c.srcc)
            if pw & sc and not (p.w == c.srcc and p.passes == c.passes): n = max(n, {4: 6, 8: 10}[p.passes])
            if pw & cw and not (p.w == c.srcc and c.w == c.srcc): n = max(n, big)
        elif (c.valu or c.vmem or c.ds) and pw & (cr | cw): n = max(n, big)
        if c.valu and set(p.srcc) & cw: n = max(n, {4: 3, 8: 7}[p.passes])
    if p.wide_store and set(p.wide_store) & cw: n = max(n, 2)
    return n
class Asm:
    def __init__(s):
        s.lines = []; s.hist = []
    def raw(s, text): s.lines.append(text)
    def label(s, name):
        s.lines.append(name + ':')
    def __call__(s, text):
        for ln in text.split('\n'):
            ln = ln.strip()
            if not ln or ln.startswith(';'): continue
            if ln.endswith(':'): s.label(ln[:-1]); continue
            i = Ins(ln)
            dist = 0; pad = 0
            for p in reversed(s.hist):
                if dist >= 12: break
                pad = max(pad, need(p, i) - dist)
                dist += p.states
            if pad > 0:
                nop = Ins(f's_nop {pad - 1}')
                s.lines.append(f'    s_nop {pad - 1}'); s.hist.append(nop)
            s.lines.append('    ' + ln); s.hist.append(i); s.hist = s.hist[-14:]
    def fence(s):
        s('s_nop 7'); s('s_nop 3')
    def text(s): return '\n'.join(s.lines) + '\n'
```

```python
import sys
from emit import Asm
S = 1179648
P1, X1, QF, KF, VF, P2, X2, P3, WQ, WP, W1P, W2P = 0, 4*S, 5*S, 6*S, 7*S, 8*S, 12*S, 13*S, 21*S, 22*S, 23*S, 24*S
WSN = 25*S
import math, struct
def f2u(x): return struct.unpack('<I', struct.pack('<f', x))[0]
SC = (96 ** -0.5) * math.log2(math.e)
MF = 'v_mfma_f32_16x16x32_bf16'
def vr(a, n=4): return f'v[{a}:{a+n-1}]'
kernels = []
a = Asm()

def begin(name, nwg, ptrs):
    a.raw(f'.globl {name}\n.p2align 8\n.type {name},@function\n{name}:')
    a.hist = []
    a(f's_cmp_ge_u32 s2, {nwg}\ns_cbranch_scc1 {name}_end')
    for off, srd, nb in ptrs: a(f's_load_dwordx2 s[{srd}:{srd+1}], s[0:1], {off}')
    a('v_lshrrev_b32 v5, 6, v0\nv_and_b32 v1, 63, v0\nv_readfirstlane_b32 s3, v5')
    a('v_and_b32 v2, 15, v0\nv_bfe_u32 v3, v0, 4, 2\nv_lshlrev_b32 v4, 4, v1')
    for off, srd, nb in ptrs: a(f's_mov_b32 s{srd+2}, {nb}\ns_mov_b32 s{srd+3}, 0x20000')
    a('s_mov_b32 s40, 0x05040100\ns_mov_b32 s41, 0x07060302\ns_mov_b32 s42, 0xffff0000')
def end(name, nv, threads, nwg, lds):
    a.label(f'{name}_end'); a('s_endpgm')
    kernels.append((name, nv, threads, nwg, lds))
def sdiv(dst, src, d, tmp=None):
    a(f's_mul_i32 s{dst}, s{src}, {65536 // d + 1}\ns_lshr_b32 s{dst}, s{dst}, 16')
def lin_loads(reg0, n, sbase, srd=8, vaddr=4, stmp=44):
    for i in range(n):
        if i % 4 == 0: a(f's_add_u32 s{stmp}, s{sbase}, {i * 1024}')
        a(f'buffer_load_dwordx4 {vr(reg0 + 4*i)}, v{vaddr}, s[{srd}:{srd+3}], s{stmp} offen offset:{(i % 4) * 1024}')
def greduce(v, t, op):
    a(f'v_mov_b32 v{t}, v{v}\nv_permlane32_swap_b32 v{v}, v{t}\n{op} v{v}, v{v}, v{t}')
    a(f'v_mov_b32 v{t}, v{v}\nv_permlane16_swap_b32 v{v}, v{t}\n{op} v{v}, v{v}, v{t}')

def ln_phase(U, nsrc, A, X, T, after, wpt, stat_lds, vst, vrd, vwr, woff, store=None):
    s0 = T + 8
    nst = 0
    for u in range(U):
        x = X + 8*u
        for s in range(nsrc):
            r = A + 4*(u*nsrc + s)
            a(f's_waitcnt vmcnt({min(63, after + nst + U*nsrc - 1 - (u*nsrc + s))})')
            d = x if s == 0 else T
            for k in range(4):
                a(f'v_lshlrev_b32 v{d+2*k}, 16, v{r+k}\nv_and_b32 v{d+2*k+1}, s42, v{r+k}')
            if s:
                for k in range(4): a(f'v_pk_add_f32 {vr(x+2*k,2)}, {vr(x+2*k,2)}, {vr(T+2*k,2)}')
        if nsrc > 1:
            r = A + 4*u*nsrc
            for k in range(4): a(f'v_cvt_pk_bf16_f32 v{r+k}, v{x+2*k}, v{x+2*k+1}')
            if store: nst += store(u, r)
            for k in range(4):
                a(f'v_lshlrev_b32 v{x+2*k}, 16, v{r+k}\nv_and_b32 v{x+2*k+1}, s42, v{r+k}')
        for k in range(4):
            p = vr(x+2*k, 2)
            if u == 0 and k == 0:
                a(f'v_pk_mul_f32 {vr(s0+2,2)}, {p}, {p}\nv_mov_b32 v{s0}, v{x}\nv_mov_b32 v{s0+1}, v{x+1}')
            else:
                a(f'v_pk_add_f32 {vr(s0,2)}, {vr(s0,2)}, {p}\nv_pk_fma_f32 {vr(s0+2,2)}, {p}, {p}, {vr(s0+2,2)}')
    a(f'v_add_f32 v{s0}, v{s0}, v{s0+1}\nv_add_f32 v{s0+1}, v{s0+2}, v{s0+3}')
    greduce(s0, T, 'v_add_f32'); greduce(s0+1, T+1, 'v_add_f32')
    a(f'ds_write_b64 v{vst}, {vr(s0,2)} offset:{stat_lds}\ns_waitcnt lgkmcnt(0)\ns_barrier')
    if wpt == 2:
        a(f'ds_read_b128 {vr(T)}, v{vrd} offset:{stat_lds}\ns_waitcnt lgkmcnt(0)')
        a(f'v_pk_add_f32 {vr(T,2)}, {vr(T,2)}, {vr(T+2,2)}')
    else:
        a(f'ds_read_b128 {vr(T)}, v{vrd} offset:{stat_lds}\nds_read_b64 {vr(T+4,2)}, v{vrd} offset:{stat_lds+16}\ns_waitcnt lgkmcnt(0)')
        a(f'v_pk_add_f32 {vr(T,2)}, {vr(T,2)}, {vr(T+2,2)}\nv_pk_add_f32 {vr(T,2)}, {vr(T,2)}, {vr(T+4,2)}')
    a(f'v_mul_f32 v{T}, {hex(f2u(1/384))}, v{T}\nv_mul_f32 v{T+1}, {hex(f2u(1/384))}, v{T+1}')
    a(f'v_fma_f32 v{T+1}, -v{T}, v{T}, v{T+1}\nv_max_f32 v{T+1}, 0, v{T+1}\nv_add_f32 v{T+1}, {hex(f2u(1e-5))}, v{T+1}')
    a(f'v_rsq_f32 v{T+2}, v{T+1}\nv_mul_f32 v{T+4}, -v{T}, v{T+2}\nv_mov_b32 v{T+3}, v{T+2}\nv_mov_b32 v{T+5}, v{T+4}')
    for u in range(U):
        x = X + 8*u
        for k in range(4): a(f'v_pk_fma_f32 {vr(x+2*k,2)}, {vr(x+2*k,2)}, {vr(T+2,2)}, {vr(T+4,2)}')
        for k in range(4): a(f'v_cvt_pk_bf16_f32 v{x+k}, v{x+2*k}, v{x+2*k+1}')
        a(f'ds_write_b128 v{vwr}, {vr(x)} offset:{woff + u*1024}')
    a('s_waitcnt lgkmcnt(0)\ns_barrier')
    return nst
def ln_addrs(U, wpt, sT, sM):
    sdiv(sT, 3, wpt); a(f's_mul_i32 s{sM}, s{sT}, {wpt}\ns_sub_u32 s{sM}, s3, s{sM}')
    a(f's_lshl_b32 s44, s{sT}, 9\nv_lshl_add_u32 v7, v2, 5, s44\ns_lshl_b32 s44, s{sM}, 3\nv_add_u32 v6, s44, v7')
    a(f's_mul_i32 s44, s3, {U*1024}\nv_add_u32 v8, s44, v4')

def gemm(nk, nf, nt, W, B, acc, swap, boff, tstride, after, wtotal=None):
    def rd(k):
        for t in range(nt): a(f'ds_read_b128 {vr(B + 4*((k%2)*nt + t))}, v4 offset:{boff + t*tstride + k*1024}')
    rd(0)
    for k in range(nk):
        if k + 1 < nk: rd(k + 1)
        a(f's_waitcnt vmcnt({min(63, after + (nk-1-k)*nf)}) lgkmcnt({nt if k+1 < nk else 0})')
        for f in range(nf):
            for t in range(nt):
                w = vr(W + 4*(k*nf + f)); b = vr(B + 4*((k%2)*nt + t)); c = vr(acc + 4*(f*nt + t))
                x, y = (b, w) if swap else (w, b)
                a(f'{MF} {c}, {x}, {y}, {c if k else 0}')
def pack4(acc, nt, t, rho, dst):
    A = lambda f, r: f'v{acc + 4*(f*nt + t) + r}'
    a(f'v_cvt_pk_bf16_f32 v{dst}, {A(0,2*rho)}, {A(1,2*rho)}\nv_cvt_pk_bf16_f32 v{dst+1}, {A(2,2*rho)}, {A(3,2*rho)}')
    a(f'v_cvt_pk_bf16_f32 v{dst+2}, {A(0,2*rho+1)}, {A(1,2*rho+1)}\nv_cvt_pk_bf16_f32 v{dst+3}, {A(2,2*rho+1)}, {A(3,2*rho+1)}')
def perms(raw, stride, w, dst, frags=None):
    for f in (frags if frags is not None else range(2*w)):
        m, p = f >> 1, f & 1
        for d in range(4):
            a(f'v_perm_b32 v{dst + 4*f + d}, v{raw + (2*d+1)*stride + m}, v{raw + 2*d*stride + m}, s{40+p}')
def kap_rows(k): return 96*(k//3) + 8*(k%3)

def k1():
    n = 'k1_kernel'
    begin(n, 255, [(72, 8, WSN), (0, 12, S), (8, 16, 884736), (16, 20, 294912), (24, 24, 884736), (32, 28, 294912), (40, 32, S), (48, 36, S)])
    a(f's_cmp_ge_u32 s2, 192\ns_cbranch_scc1 k1_repack')
    a('s_and_b32 s4, s2, 7\ns_lshr_b32 s4, s4, 1\ns_lshr_b32 s5, s2, 3\ns_lshl_b32 s5, s5, 1\ns_and_b32 s6, s2, 1\ns_add_u32 s5, s5, s6')
    ln_addrs(4, 3, 46, 47)
    HL, ST, QK, OL = 0, 24576, 25600, 37888
    a('v_and_b32 v9, 3, v2\nv_mul_u32_u24 v9, 384, v9\nv_lshrrev_b32 v10, 2, v2\ns_lshl_b32 s44, s5, 3\ns_lshl_b32 s45, s46, 2\ns_add_u32 s44, s44, s45')
    a('v_add3_u32 v9, v9, v10, s44\nv_mul_u32_u24 v9, 768, v9\nv_mul_u32_u24 v10, 48, v3\nv_add_u32 v9, v9, v10')
    for q in range(4):
        a(f's_lshl_b32 s44, s47, 2\ns_add_u32 s44, s44, {q}\ns_mul_i32 s45, s44, 11\ns_lshr_b32 s45, s45, 5\ns_mul_i32 s45, s45, 144\ns_lshl_b32 s44, s44, 4\ns_add_u32 s{48+q}, s44, s45')
    a('s_waitcnt lgkmcnt(0)')
    A = 16
    for q in range(4): a(f'buffer_load_dwordx4 {vr(A+4*q)}, v9, s[12:15], s{48+q} offen')
    a('s_cmp_ge_u32 s3, 3\ns_cbranch_scc1 k1_proj')
    RING, NR = 112, 4
    a('v_mul_u32_u24 v10, 55296, v3\nv_mul_u32_u24 v11, 12, v2\ns_mul_i32 s44, s3, 768\ns_mul_i32 s45, s4, 192\ns_add_u32 s44, s44, s45\nv_add3_u32 v10, v10, v11, s44')
    for q in range(1, 4): a(f'v_add_u32 v{10+q}, {q*4608}, v10')
    def wl(k):
        a(f's_mov_b32 s44, {kap_rows(k)*2304}')
        for j in range(8): a(f'buffer_load_dwordx3 {vr(RING + (k%NR)*32 + 4*j, 3)}, v{10 + j//2}, s[16:19], s44 offen offset:{(j&1)*2304}')
    for k in range(NR): wl(k)
    ln_phase(4, 1, A, 32, 64, 8*NR, 3, ST, 6, 7, 8, HL)
    ACC, FR, B = 16, 64, 88
    for role in ('qk', 'v'):
        if role == 'qk': a('s_cmp_eq_u32 s3, 2\ns_cbranch_scc1 k1_v')
        else: a.label('k1_v')
        def rd(k):
            for t in range(2): a(f'ds_read_b128 {vr(B + 4*((k%2)*2 + t))}, v4 offset:{HL + t*12288 + k*1024}')
        rd(0)
        for k in range(12):
            if k + 1 < 12: rd(k + 1)
            a(f's_waitcnt vmcnt({8*min(NR-1, 11-k)})')
            perms(RING + (k%NR)*32, 4, 3, FR)
            if k + NR < 12: wl(k + NR)
            if k == 7: a('s_barrier')
            a(f's_waitcnt lgkmcnt({2 if k < 11 else 0})')
            for f in range(6):
                for t in range(2):
                    w = vr(FR + 4*f); b = vr(B + 4*((k%2)*2 + t)); c = vr(ACC + 4*(f*2 + t))
                    x, y = (b, w) if role == 'v' else (w, b)
                    a(f'{MF} {c}, {x}, {y}, {c if k else 0}')
        if role == 'qk':
            a('s_mul_i32 s44, s3, 6144\nv_add_u32 v9, s44, v4')
            for t in range(2):
                for r in range(4):
                    for f in (0, 2, 4): a(f'v_cvt_pk_bf16_f32 v{FR + 12*t + 3*r + f//2}, v{ACC + 4*(f*2+t) + r}, v{ACC + 4*((f+1)*2+t) + r}')
                for i in range(3): a(f'ds_write_b128 v9, {vr(FR + 12*t + 4*i)} offset:{QK + (t*3+i)*1024}')
            a('s_waitcnt lgkmcnt(0)\ns_barrier\ns_endpgm')
        else:
            for f in range(6):
                for t in range(2):
                    c = ACC + 4*(f*2+t)
                    a(f'v_cvt_pk_bf16_f32 v{FR + 4*f + 2*t}, v{c}, v{c+1}\nv_cvt_pk_bf16_f32 v{FR + 4*f + 2*t + 1}, v{c+2}, v{c+3}')
            a(f'v_lshrrev_b32 v9, 2, v2\nv_cmp_eq_u32 vcc, v9, v3\ns_mov_b32 s44, {hex(f2u(SC))}\nv_mov_b32 v98, 0\nv_mov_b32 v99, 0\ns_barrier')
            for i in range(12): a(f'ds_read_b128 {vr(RING + 4*i)}, v4 offset:{QK + i*1024}')
            a('s_waitcnt lgkmcnt(0)')
            for i in range(3):
                for t in range(2):
                    c = vr(88 + 4*t)
                    a(f'{MF} {c}, {vr(RING + 24 + 4*(t*3+i))}, {vr(RING + 4*(t*3+i))}, {c if i else 0}')
            for t in range(2):
                c = 88 + 4*t; m = 104 + t
                a(f'v_max3_f32 v{m}, v{c}, v{c+1}, v{c+2}\nv_max_f32 v{m}, v{m}, v{c+3}\nv_mul_f32 v{m}, s44, v{m}')
                for r in range(4): a(f'v_fma_f32 v{c+r}, v{c+r}, s44, -v{m}')
                for r in range(4): a(f'v_exp_f32 v{c+r}, v{c+r}')
                a(f'v_add_f32 v{m}, v{c}, v{c+1}\nv_add_f32 v{m+2}, v{c+2}, v{c+3}\nv_add_f32 v{m}, v{m}, v{m+2}\nv_rcp_f32 v{m}, v{m}')
                for r in range(4): a(f'v_mul_f32 v{c+r}, v{c+r}, v{m}')
                p = 96 + 4*t
                a(f'v_cvt_pk_bf16_f32 v{p}, v{c}, v{c+1}\nv_cvt_pk_bf16_f32 v{p+1}, v{c+2}, v{c+3}')
                a(f'v_cndmask_b32 v{p}, 0, v{p}, vcc\nv_cndmask_b32 v{p+1}, 0, v{p+1}, vcc')
            for t in range(2):
                for f in range(6): a(f'{MF} {vr(ACC + 4*(f*2+t))}, {vr(FR + 4*f)}, {vr(96 + 2*t)}, 0')
            for t in range(2):
                for r in range(4):
                    for f in (0, 2, 4): a(f'v_cvt_pk_bf16_f32 v{RING + 12*t + 3*r + f//2}, v{ACC + 4*(f*2+t) + r}, v{ACC + 4*((f+1)*2+t) + r}')
                for i in range(3): a(f'ds_write_b128 v4, {vr(RING + 12*t + 4*i)} offset:{OL + (t*3+i)*1024}')
            a('s_waitcnt lgkmcnt(0)\ns_barrier\ns_endpgm')
    a.label('k1_proj'); a.hist = []
    ln_phase(4, 1, A, 32, 64, 0, 3, ST, 6, 7, 8, HL)
    a('s_lshl_b32 s44, s47, 2\nv_and_b32 v10, 3, v2\nv_add_u32 v10, s44, v10\nv_mul_u32_u24 v11, 11, v10\nv_lshrrev_b32 v11, 5, v11\nv_mul_u32_u24 v11, 144, v11')
    a('v_lshl_add_u32 v10, v10, 4, v11\nv_lshrrev_b32 v11, 2, v2\nv_mul_u32_u24 v11, 48, v11\nv_mul_u32_u24 v12, 18432, v3\nv_add3_u32 v10, v10, v11, v12')
    a('s_mul_i32 s45, s4, 73728\nv_add_u32 v11, 3072, v10')
    a('v_and_b32 v12, 3, v2\nv_mul_u32_u24 v12, 294912, v12\nv_lshrrev_b32 v13, 2, v2\nv_lshl_add_u32 v13, v3, 4, v13\nv_lshl_add_u32 v12, v13, 4, v12')
    a(f's_lshr_b32 s48, s5, 1\ns_mul_i32 s48, s48, 12288\ns_and_b32 s49, s5, 1\ns_lshl_b32 s49, s49, 7\ns_add_u32 s48, s48, s49\ns_mul_i32 s49, s4, {S}\ns_add_u32 s48, s48, s49')
    a(f's_lshl_b32 s49, s47, 12\ns_add_u32 s48, s48, s49\ns_add_u32 s48, s48, {P1}')
    a('s_barrier')
    RAW, FR = 16, 112
    for i in range(3):
        a(f's_add_u32 s44, s45, {i*6144}')
        for j in range(8): a(f'buffer_load_dwordx4 {vr(RAW + 32*i + 4*j)}, v{10 + j//4}, s[20:23], s44 offen offset:{(j&3)*768}')
    for i in range(3):
        a(f's_waitcnt vmcnt({8*(2-i)})')
        perms(RAW + 32*i, 4, 4, FR + 32*i)
    a('s_barrier\ns_barrier')
    B, ACC = 208, 16
    for i in range(3):
        for t in range(2): a(f'ds_read_b128 {vr(B + 4*(i*2+t))}, v4 offset:{OL + (t*3+i)*1024}')
    for i in range(3):
        a(f's_waitcnt lgkmcnt({2*(2-i)})')
        for f in range(8):
            for t in range(2):
                c = vr(ACC + 4*(f*2+t)); a(f'{MF} {c}, {vr(FR + 32*i + 4*f)}, {vr(B + 4*(i*2+t))}, {c if i else 0}')
    for t in range(2):
        for r in range(4):
            d = 80 + 4*((t*4 + r) % 8)
            for f in (0, 2, 4, 6): a(f'v_cvt_pk_bf16_f32 v{d + f//2}, v{ACC + 4*(f*2+t) + r}, v{ACC + 4*((f+1)*2+t) + r}')
            a(f'buffer_store_dwordx4 {vr(d)}, v12, s[8:11], s48 offen offset:{r*1024 + t*64}')
    a('s_endpgm')
    a.label('k1_repack'); a.hist = []
    a('s_sub_u32 s4, s2, 192\ns_mul_i32 s4, s4, 6\ns_add_u32 s4, s4, s3\ns_waitcnt lgkmcnt(0)')
    a('s_cmp_ge_u32 s4, 288\ns_cbranch_scc1 k1_rp2')
    for which in (0, 1):
        if which == 0: a('s_cmp_ge_u32 s4, 144\ns_cbranch_scc1 k1_rp1')
        else: a.label('k1_rp1'); a('s_sub_u32 s4, s4, 144')
        ld, w, srd = (2304, 3, 24) if which == 0 else (3072, 4, 32)
        sdiv(5, 4, 12); a('s_mul_i32 s6, s5, 12\ns_sub_u32 s6, s4, s6')
        a(f's_mul_i32 s44, s6, 11\ns_lshr_b32 s44, s44, 5\ns_mul_i32 s44, s44, 72\ns_lshl_b32 s45, s6, 3\ns_add_u32 s44, s44, s45\ns_mul_i32 s44, s44, {ld}')
        a(f's_mul_i32 s45, s5, {64*w}\ns_add_u32 s44, s44, s45')
        a(f'v_mul_u32_u24 v10, {24*ld}, v3\nv_mul_u32_u24 v11, {4*w}, v2\nv_add_u32 v10, v10, v11')
        for j in range(8):
            a(f'buffer_load_dwordx{w} {vr(16 + 4*j, w)}, v10, s[{srd}:{srd+3}], s44 offen\ns_add_u32 s44, s44, {ld}')
        if which == 0:
            a(f's_and_b32 s44, s5, 3\ns_mul_i32 s44, s44, 6\ns_lshr_b32 s45, s5, 2\ns_lshl_b32 s45, s45, 1\ns_add_u32 s44, s44, s45\ns_mul_i32 s44, s44, 36864\ns_mul_i32 s45, s6, 3072\ns_add_u32 s44, s44, s45\ns_add_u32 s44, s44, {WQ}\ns_add_u32 s45, s44, 36864')
        else:
            a(f's_mul_i32 s44, s5, 98304\ns_lshl_b32 s45, s6, 11\ns_add_u32 s44, s44, s45\ns_add_u32 s44, s44, {W1P}')
        a('s_waitcnt vmcnt(0)')
        perms(16, 4, w, 48)
        for f in range(2*w):
            if which == 0: a(f'buffer_store_dwordx4 {vr(48 + 4*f)}, v4, s[8:11], s{44 + f//3} offen offset:{(f%3)*1024}')
            else:
                a(f'buffer_store_dwordx4 {vr(48 + 4*f)}, v4, s[8:11], s44 offen offset:{(f&1)*1024}')
                if f & 1: a('s_add_u32 s44, s44, 24576')
        a('s_endpgm')
    a.label('k1_rp2'); a.hist = []
    for which in (0, 1):
        if which == 0: a('s_cmp_ge_u32 s4, 306\ns_cbranch_scc1 k1_rp3\ns_sub_u32 s4, s4, 288')
        else: a.label('k1_rp3'); a('s_sub_u32 s4, s4, 306')
        d = 3 if which == 0 else 12
        sdiv(5, 4, d); a(f's_mul_i32 s6, s5, {d}\ns_sub_u32 s6, s4, s6')
        a('s_lshl_b32 s44, s5, 1\nv_bfe_u32 v10, v2, 1, 1\nv_add_u32 v10, s44, v10\nv_mul_u32_u24 v11, 11, v10\nv_lshrrev_b32 v11, 5, v11\nv_mul_u32_u24 v11, 144, v11')
        a('v_lshl_add_u32 v10, v10, 4, v11\nv_lshrrev_b32 v11, 2, v2\nv_mul_u32_u24 v11, 48, v11\nv_and_b32 v12, 1, v2\nv_lshlrev_b32 v12, 3, v12\nv_add3_u32 v10, v10, v11, v12')
        a(f'v_mul_u32_u24 v11, {(24 if which == 0 else 32)*768}, v3\nv_add_u32 v10, v10, v11')
        a(f's_mul_i32 s45, s6, {(2 if which == 0 else 128)*768}')
        srd = 28 if which == 0 else 36
        for tk in range(4):
            for j in range(8):
                row = (96*tk + 6*(j&3) + (j>>2)) if which == 0 else (2*tk + 8*(j&3) + (j>>2))
                a(f's_add_u32 s44, s45, {row*768}\nbuffer_load_dwordx2 {vr(16 + 16*tk + 2*j, 2)}, v10, s[{srd}:{srd+3}], s44 offen')
        for tk in range(4):
            if which == 0:
                a(f's_mul_i32 s44, s5, 3\ns_add_u32 s44, s44, s6\ns_lshl_b32 s44, s44, 12\ns_add_u32 s44, s44, {WP + tk*73728}')
            else:
                a(f's_lshl_b32 s46, s6, 2\ns_add_u32 s46, s46, {tk}'); sdiv(47, 46, 6)
                a(f's_mul_i32 s44, s47, 30\ns_add_u32 s44, s44, s46\ns_mul_i32 s46, s5, 6\ns_add_u32 s44, s44, s46\ns_lshl_b32 s44, s44, 12\ns_add_u32 s44, s44, {W2P}')
            a(f's_waitcnt vmcnt({8*(3-tk) + 4*tk})')
            perms(16 + 16*tk, 2, 2, 80 + 16*tk)
            for f in range(4): a(f'buffer_store_dwordx4 {vr(80 + 16*tk + 4*f)}, v4, s[8:11], s44 offen offset:{f*1024}')
        if which == 0: a('s_endpgm')
    end(n, 240, 384, 255, 44032)

def map_th():
    a('s_and_b32 s44, s2, 7\ns_lshr_b32 s4, s44, 1\ns_and_b32 s5, s44, 1\ns_lshl_b32 s5, s5, 1\ns_bfe_u32 s44, s2, 0x10003\ns_add_u32 s5, s5, s44\ns_lshr_b32 s6, s2, 4\ns_lshl_b32 s7, s5, 2\ns_add_u32 s7, s7, s4')
def k2():
    n = 'k2_kernel'
    begin(n, 192, [(72, 8, WSN), (0, 12, S)])
    map_th(); ln_addrs(4, 3, 46, 47)
    HL, ST = 0, 24576
    a('s_mul_i32 s48, s5, 24\ns_lshl_b32 s44, s6, 1\ns_add_u32 s48, s48, s44\ns_mul_i32 s49, s48, 12288\ns_lshl_b32 s44, s3, 12\ns_add_u32 s49, s49, s44')
    a('s_add_u32 s44, s48, s46\ns_lshl_b32 s44, s44, 4\nv_add_u32 v9, s44, v2\nv_mul_u32_u24 v9, 768, v9\nv_mul_u32_u24 v10, 48, v3\nv_add_u32 v9, v9, v10')
    for q in range(4):
        a(f's_lshl_b32 s44, s47, 2\ns_add_u32 s44, s44, {q}\ns_mul_i32 s45, s44, 11\ns_lshr_b32 s45, s45, 5\ns_mul_i32 s45, s45, 144\ns_lshl_b32 s44, s44, 4\ns_add_u32 s{52+q}, s44, s45')
    for s in range(4): a(f's_add_u32 s{56+s}, s49, {P1 + s*S}')
    a(f's_add_u32 s60, s49, {X1}')
    a(f's_mul_i32 s50, s4, 6\ns_add_u32 s50, s50, s3\ns_mul_i32 s50, s50, 36864\ns_add_u32 s50, s50, {WQ}')
    a('s_waitcnt lgkmcnt(0)')
    A, W = 12, 92
    for u in range(4):
        a(f'buffer_load_dwordx4 {vr(A + 20*u)}, v9, s[12:15], s{52+u} offen')
        for s in range(4): a(f'buffer_load_dwordx4 {vr(A + 20*u + 4 + 4*s)}, v4, s[8:11], s{56+s} offen offset:{u*1024}')
    lin_loads(W, 36, 50)
    Xs = [A + 20*u + 4 for u in range(4)]
    ln_phase2(4, 5, A, 236, 36, 3, ST, HL, lambda u, r: st_owner(u, r, 4, 60))
    B, ACC = 12, 28
    for role in ('qk', 'v'):
        if role == 'qk': a('s_cmp_ge_u32 s3, 4\ns_cbranch_scc1 k2_v')
        else: a.label('k2_v')
        gemm(12, 3, 2, W, B, ACC, role == 'v', HL, 12288, 0)
        if role == 'qk':
            a(f's_mul_i32 s44, s7, 24\ns_lshl_b32 s45, s6, 1\ns_add_u32 s44, s44, s45\ns_mul_i32 s44, s44, 3072\ns_lshr_b32 s45, s3, 1\ns_mul_i32 s45, s45, {S}\ns_add_u32 s44, s44, s45\ns_add_u32 s44, s44, {QF}')
            a('s_and_b32 s45, s3, 1\ns_mul_i32 s51, s45, 1032\ns_add_u32 s51, s51, s44\ns_mul_i32 s52, s45, 2040\ns_add_u32 s52, s52, s44\ns_add_u32 s52, s52, 8\ns_add_u32 s53, s51, 1024')
            for t in range(2):
                for f in range(3):
                    c = ACC + 4*(f*2+t); d = 52 + 2*(t*3+f)
                    a(f'v_cvt_pk_bf16_f32 v{d}, v{c}, v{c+1}\nv_cvt_pk_bf16_f32 v{d+1}, v{c+2}, v{c+3}')
                    a(f'buffer_store_dwordx2 {vr(d,2)}, v4, s[8:11], s{51+f} offen offset:{t*3072}')
            a('s_endpgm')
        else:
            a(f's_mul_i32 s44, s7, 6\ns_and_b32 s45, s3, 1\ns_mul_i32 s45, s45, 3\ns_add_u32 s44, s44, s45\ns_mul_i32 s44, s44, 12\ns_add_u32 s44, s44, s6\ns_lshl_b32 s44, s44, 10\ns_add_u32 s44, s44, {VF}')
            for f in range(3):
                for t in range(2):
                    c = ACC + 4*(f*2+t); d = 52 + 4*f + 2*t
                    a(f'v_cvt_pk_bf16_f32 v{d}, v{c}, v{c+1}\nv_cvt_pk_bf16_f32 v{d+1}, v{c+2}, v{c+3}')
                a(f'buffer_store_dwordx4 {vr(52 + 4*f)}, v4, s[8:11], s44 offen\ns_add_u32 s44, s44, 12288')
    end(n, 256, 384, 192, 25600)

lab = [0]
def st_owner(u, r, sOwn, sAddr, nown=None):
    lab[0] += 1
    a(f's_cmp_lg_u32 s{sOwn}, {u}\ns_cbranch_scc1 L{lab[0]}')
    if u >= 4: a(f's_add_u32 s44, s{sAddr}, 4096\nbuffer_store_dwordx4 {vr(r)}, v4, s[8:11], s44 offen offset:{(u-4)*1024}')
    else: a(f'buffer_store_dwordx4 {vr(r)}, v4, s[8:11], s{sAddr} offen offset:{u*1024}')
    a.label(f'L{lab[0]}')
    return 0
def ln_phase2(U, nsrc, A, T, after, wpt, stat_lds, woff, store, mid=None):
    s0 = T + 16
    for u in range(U):
        base = A + 4*nsrc*u
        for s in range(nsrc):
            r = base + 4*s
            a(f's_waitcnt vmcnt({min(63, after + U*nsrc - 1 - (u*nsrc + s))})')
            d = T if s == 0 else T + 8
            for k in range(4): a(f'v_lshlrev_b32 v{d+2*k}, 16, v{r+k}\nv_and_b32 v{d+2*k+1}, s42, v{r+k}')
            if s:
                for k in range(4): a(f'v_pk_add_f32 {vr(T+2*k,2)}, {vr(T+2*k,2)}, {vr(T+8+2*k,2)}')
        for k in range(4): a(f'v_cvt_pk_bf16_f32 v{base+k}, v{T+2*k}, v{T+2*k+1}')
        store(u, base)
        x = base + 4
        for k in range(4): a(f'v_lshlrev_b32 v{x+2*k}, 16, v{base+k}\nv_and_b32 v{x+2*k+1}, s42, v{base+k}')
        for k in range(4):
            p = vr(x+2*k, 2)
            if u == 0 and k == 0: a(f'v_pk_mul_f32 {vr(s0+2,2)}, {p}, {p}\nv_mov_b32 v{s0}, v{x}\nv_mov_b32 v{s0+1}, v{x+1}')
            else: a(f'v_pk_add_f32 {vr(s0,2)}, {vr(s0,2)}, {p}\nv_pk_fma_f32 {vr(s0+2,2)}, {p}, {p}, {vr(s0+2,2)}')
    a(f'v_add_f32 v{s0}, v{s0}, v{s0+1}\nv_add_f32 v{s0+1}, v{s0+2}, v{s0+3}')
    greduce(s0, T, 'v_add_f32'); greduce(s0+1, T+1, 'v_add_f32')
    a(f'ds_write_b64 v6, {vr(s0,2)} offset:{stat_lds}\ns_waitcnt lgkmcnt(0)\ns_barrier')
    if wpt == 2:
        a(f'ds_read_b128 {vr(T)}, v7 offset:{stat_lds}\ns_waitcnt lgkmcnt(0)\nv_pk_add_f32 {vr(T,2)}, {vr(T,2)}, {vr(T+2,2)}')
    else:
        a(f'ds_read_b128 {vr(T)}, v7 offset:{stat_lds}\nds_read_b64 {vr(T+4,2)}, v7 offset:{stat_lds+16}\ns_waitcnt lgkmcnt(0)')
        a(f'v_pk_add_f32 {vr(T,2)}, {vr(T,2)}, {vr(T+2,2)}\nv_pk_add_f32 {vr(T,2)}, {vr(T,2)}, {vr(T+4,2)}')
    a(f'v_mul_f32 v{T}, {hex(f2u(1/384))}, v{T}\nv_mul_f32 v{T+1}, {hex(f2u(1/384))}, v{T+1}')
    a(f'v_fma_f32 v{T+1}, -v{T}, v{T}, v{T+1}\nv_max_f32 v{T+1}, 0, v{T+1}\nv_add_f32 v{T+1}, {hex(f2u(1e-5))}, v{T+1}')
    a(f'v_rsq_f32 v{T+2}, v{T+1}\nv_mul_f32 v{T+4}, -v{T}, v{T+2}\nv_mov_b32 v{T+3}, v{T+2}\nv_mov_b32 v{T+5}, v{T+4}')
    for u in range(U):
        x = A + 4*nsrc*u + 4
        for k in range(4): a(f'v_pk_fma_f32 {vr(x+2*k,2)}, {vr(x+2*k,2)}, {vr(T+2,2)}, {vr(T+4,2)}')
        for k in range(4): a(f'v_cvt_pk_bf16_f32 v{x+k}, v{x+2*k}, v{x+2*k+1}')
        a(f'ds_write_b128 v8, {vr(x)} offset:{woff + u*1024}')
    a('s_waitcnt lgkmcnt(0)')
    if mid: mid()
    a('s_barrier')

def k3():
    n = 'k3_kernel'
    begin(n, 192, [(72, 8, WSN)])
    map_th()
    QL, MX, SM, PL, OL = 0, 6144, 7168, 8192, 32768
    a(f's_mul_i32 s46, s7, 73728\ns_mul_i32 s44, s6, 6144\ns_lshl_b32 s45, s3, 10\ns_add_u32 s47, s46, s44\ns_add_u32 s47, s47, s45\ns_add_u32 s47, s47, {QF}')
    a(f's_mul_i32 s44, s3, 12288\ns_add_u32 s46, s46, s44\ns_add_u32 s48, s46, {KF}\ns_add_u32 s49, s46, {VF}')
    a(f's_mul_i32 s50, s4, 73728\ns_add_u32 s50, s50, s44\ns_add_u32 s50, s50, {WP}')
    a('v_add_u32 v8, s45, v4\ns_lshl_b32 s44, s3, 2\nv_lshlrev_b32 v7, 5, v2\nv_add_u32 v6, s44, v7')
    a('s_waitcnt lgkmcnt(0)')
    Q, K, V, W, SA = 12, 36, 84, 132, 180
    a(f'buffer_load_dwordx4 {vr(Q)}, v4, s[8:11], s47 offen')
    lin_loads(K, 12, 48); lin_loads(V, 12, 49); lin_loads(W, 12, 50)
    a(f's_waitcnt vmcnt(36)\nds_write_b128 v8, {vr(Q)} offset:{QL}\ns_waitcnt lgkmcnt(0)\ns_barrier')
    for i in range(6): a(f'ds_read_b128 {vr(Q + 4*i)}, v4 offset:{QL + i*1024}')
    a(f's_mov_b32 s51, {hex(f2u(SC))}\ns_waitcnt lgkmcnt(0)')
    for tau in range(4):
        a(f's_waitcnt vmcnt({24 + 3*(3-tau)})')
        for i in range(3):
            for u in range(2):
                c = vr(SA + 4*(tau*2+u)); a(f'{MF} {c}, {vr(K + 4*(tau*3+i))}, {vr(Q + 4*(u*3+i))}, {c if i else 0}')
    M, T = 212, 216
    for u in range(2):
        e = [SA + 4*(tau*2+u) + r for tau in range(4) for r in range(4)]
        a(f'v_max_f32 v{M+u}, v{e[0]}, v{e[1]}')
        for k in range(2, 16, 2): a(f'v_max3_f32 v{M+u}, v{M+u}, v{e[k]}, v{e[k+1]}')
    for u in range(2): greduce(M+u, T+u, 'v_max_f32')
    for u in range(2): a(f'ds_write_b32 v6, v{M+u} offset:{MX + u*512}')
    a('s_waitcnt lgkmcnt(0)\ns_barrier')
    for u in range(2): a(f'ds_read_b128 {vr(T + 8*u)}, v7 offset:{MX + u*512}\nds_read_b64 {vr(T + 8*u + 4, 2)}, v7 offset:{MX + u*512 + 16}')
    a('s_lshl_b32 s44, s3, 12\nv_add_u32 v8, s44, v4\ns_waitcnt lgkmcnt(0)')
    for u in range(2):
        t = T + 8*u
        a(f'v_max3_f32 v{M+u}, v{t}, v{t+1}, v{t+2}\nv_max3_f32 v{M+u}, v{M+u}, v{t+3}, v{t+4}\nv_max_f32 v{M+u}, v{M+u}, v{t+5}\nv_mul_f32 v{M+u}, s51, v{M+u}')
    for u in range(2):
        for kb in range(2):
            e = [SA + 4*((2*kb+h)*2+u) + r for h in range(2) for r in range(4)]
            for x in e: a(f'v_fma_f32 v{x}, v{x}, s51, -v{M+u}')
            for x in e: a(f'v_exp_f32 v{x}, v{x}')
            d = Q + 4*(u*2+kb)
            for k in range(4): a(f'v_cvt_pk_bf16_f32 v{d+k}, v{e[2*k]}, v{e[2*k+1]}')
            a(f'ds_write_b128 v8, {vr(d)} offset:{PL + (kb*2+u)*1024}')
            s = T + 2*u
            if kb == 0: a(f'v_pk_add_f32 {vr(s,2)}, {vr(e[0],2)}, {vr(e[2],2)}')
            else: a(f'v_pk_add_f32 {vr(s,2)}, {vr(s,2)}, {vr(e[0],2)}\nv_pk_add_f32 {vr(s,2)}, {vr(s,2)}, {vr(e[2],2)}')
            a(f'v_pk_add_f32 {vr(s,2)}, {vr(s,2)}, {vr(e[4],2)}\nv_pk_add_f32 {vr(s,2)}, {vr(s,2)}, {vr(e[6],2)}')
        a(f'v_add_f32 v{M+2+u}, v{T+2*u}, v{T+2*u+1}')
    for u in range(2): greduce(M+2+u, T+u, 'v_add_f32')
    for u in range(2): a(f'ds_write_b32 v6, v{M+2+u} offset:{SM + u*512}')
    a('s_waitcnt lgkmcnt(0)\ns_barrier')
    PB = [K + 4*i for i in range(12)] + [SA + 4*i for i in range(8)] + [Q + 4*i for i in range(4)]
    for i in range(14): a(f'ds_read_b128 {vr(PB[i])}, v4 offset:{PL + i*1024}')
    OA = Q + 16
    for kb in range(12):
        nrd = min(24, 14 + 2*kb)
        a(f's_waitcnt vmcnt({12 + 11 - kb}) lgkmcnt({nrd - 2*kb - 2})')
        for u in range(2):
            c = vr(OA + 4*u); a(f'{MF} {c}, {vr(V + 4*kb)}, {vr(PB[2*kb+u])}, {c if kb else 0}')
        for i in range(nrd, min(24, nrd + 2)): a(f'ds_read_b128 {vr(PB[i])}, v4 offset:{PL + i*1024}')
    for u in range(2): a(f'ds_read_b128 {vr(T + 8*u)}, v7 offset:{SM + u*512}\nds_read_b64 {vr(T + 8*u + 4, 2)}, v7 offset:{SM + u*512 + 16}')
    a('s_lshr_b32 s44, s3, 1\ns_lshl_b32 s44, s44, 10\ns_and_b32 s45, s3, 1\ns_lshl_b32 s45, s45, 3\ns_add_u32 s44, s44, s45\nv_add_u32 v8, s44, v4\ns_waitcnt lgkmcnt(0)')
    for u in range(2):
        t = T + 8*u
        a(f'v_pk_add_f32 {vr(t,2)}, {vr(t,2)}, {vr(t+2,2)}\nv_pk_add_f32 {vr(t,2)}, {vr(t,2)}, {vr(t+4,2)}\nv_add_f32 v{t}, v{t}, v{t+1}\nv_rcp_f32 v{t}, v{t}')
    for u in range(2):
        t = T + 8*u; c = OA + 4*u
        for r in range(4): a(f'v_mul_f32 v{c+r}, v{c+r}, v{t}')
        a(f'v_cvt_pk_bf16_f32 v{c}, v{c}, v{c+1}\nv_cvt_pk_bf16_f32 v{c+1}, v{c+2}, v{c+3}')
        a(f'ds_write_b64 v8, {vr(c,2)} offset:{OL + u*3072}')
    a(f's_mul_i32 s44, s5, 24\ns_lshl_b32 s45, s6, 1\ns_add_u32 s44, s44, s45\ns_mul_i32 s44, s44, 12288\ns_lshl_b32 s45, s3, 11\ns_add_u32 s44, s44, s45\ns_mul_i32 s45, s4, {S}\ns_add_u32 s52, s44, s45\ns_add_u32 s52, s52, {P2}\ns_add_u32 s53, s52, 12288')
    a('s_waitcnt lgkmcnt(0)\ns_barrier')
    gemm(3, 4, 2, W, K, SA, False, OL, 3072, 0)
    for t in range(2):
        for rho in range(2):
            d = V + 4*(t*2+rho); pack4(SA, 2, t, rho, d)
            a(f'buffer_store_dwordx4 {vr(d)}, v4, s[8:11], s{52+t} offen offset:{rho*1024}')
    end(n, 232, 384, 192, 38912)

def k4():
    n = 'k4_kernel'
    begin(n, 256, [(72, 8, WSN)])
    a('s_and_b32 s5, s2, 7\ns_lshl_b32 s5, s5, 2\ns_bfe_u32 s44, s2, 0x20003\ns_add_u32 s5, s5, s44\ns_lshr_b32 s4, s2, 5')
    ln_addrs(6, 2, 46, 47)
    HL, ST, GL = 0, 36864, 38912
    a('s_mul_i32 s49, s5, 36864\ns_mul_i32 s44, s3, 6144\ns_add_u32 s49, s49, s44')
    a(f's_add_u32 s52, s49, {X1}')
    for s in range(4): a(f's_add_u32 s{53+s}, s49, {P2 + s*S}')
    a(f's_add_u32 s60, s49, {X2}\nv_add_u32 v9, 4096, v4')
    a(f's_mul_i32 s50, s4, 6\ns_add_u32 s50, s50, s3\ns_mul_i32 s50, s50, 24576\ns_add_u32 s51, s50, {W2P}\ns_add_u32 s50, s50, {W1P}')
    a('s_waitcnt lgkmcnt(0)')
    A, W = 12, 132
    for u in range(6):
        for s in range(5): a(f'buffer_load_dwordx4 {vr(A + 20*u + 4*s)}, v{4 if u < 4 else 9}, s[8:11], s{52+s} offen offset:{(u%4)*1024}')
    lin_loads(W, 24, 50)
    W2 = 36
    ln_phase2(6, 5, A, 228, 24, 2, ST, HL, lambda u, r: st_owner(u, r, 4, 60), mid=lambda: lin_loads(W2, 24, 51))
    B, ACC = 12, 228
    gemm(12, 2, 3, W, B, ACC, False, HL, 12288, 24)
    ga = -2 * math.sqrt(2 / math.pi) * math.log2(math.e)
    a(f's_mov_b32 s44, {hex(f2u(ga * 0.044715))}\nv_mov_b32 v10, {hex(f2u(ga))}\ns_lshl_b32 s45, s3, 10\nv_add_u32 v8, s45, v4')
    for t in range(3):
        e = [ACC + 4*(p*3+t) + r for p in range(2) for r in range(4)]
        T = W + 8*t
        for k, x in enumerate(e): a(f'v_mul_f32 v{T+k}, v{x}, v{x}')
        for k, x in enumerate(e): a(f'v_fma_f32 v{T+k}, v{T+k}, s44, v10')
        for k, x in enumerate(e): a(f'v_mul_f32 v{T+k}, v{T+k}, v{x}')
        for k, x in enumerate(e): a(f'v_exp_f32 v{T+k}, v{T+k}')
        for k, x in enumerate(e): a(f'v_add_f32 v{T+k}, 1.0, v{T+k}')
        for k, x in enumerate(e): a(f'v_rcp_f32 v{T+k}, v{T+k}')
        for k, x in enumerate(e): a(f'v_mul_f32 v{T+k}, v{T+k}, v{x}')
        for k in range(4): a(f'v_cvt_pk_bf16_f32 v{T+k}, v{T+2*k}, v{T+2*k+1}')
        a(f'ds_write_b128 v8, {vr(T)} offset:{GL + t*6144}')
    a(f's_mul_i32 s52, s5, 36864\ns_lshl_b32 s45, s3, 11\ns_add_u32 s52, s52, s45\ns_mul_i32 s45, s4, {S}\ns_add_u32 s52, s52, s45\ns_add_u32 s52, s52, {P3}\ns_add_u32 s53, s52, 12288\ns_add_u32 s54, s52, 24576')
    a('s_waitcnt lgkmcnt(0)\ns_barrier')
    ACC = 160
    gemm(6, 4, 3, W2, B, ACC, False, GL, 6144, 0)
    for t in range(3):
        for rho in range(2):
            d = 208 + 4*(t*2+rho); pack4(ACC, 3, t, rho, d)
            a(f'buffer_store_dwordx4 {vr(d)}, v4, s[8:11], s{52+t} offen offset:{rho*1024}')
    end(n, 256, 384, 256, 57344)

def k5():
    n = 'k5_kernel'
    begin(n, 192, [(72, 8, WSN), (56, 12, S)])
    a('s_mul_i32 s4, s2, 6\ns_add_u32 s4, s4, s3\ns_lshl_b32 s5, s4, 10')
    a(f's_add_u32 s5, s5, {X2}\ns_waitcnt lgkmcnt(0)')
    for s in range(9):
        a(f'buffer_load_dwordx4 {vr(12 + 4*s)}, v4, s[8:11], s5 offen')
        if s < 8: a(f's_add_u32 s5, s5, {S}')
    a('s_lshr_b32 s6, s2, 1\ns_and_b32 s7, s2, 1\ns_mul_i32 s7, s7, 6\ns_add_u32 s7, s7, s3')
    a('s_mul_i32 s44, s7, 11\ns_lshr_b32 s44, s44, 5\ns_mul_i32 s44, s44, 144\ns_lshl_b32 s45, s7, 4\ns_add_u32 s44, s44, s45\ns_mul_i32 s45, s6, 12288\ns_add_u32 s44, s44, s45')
    a('v_mul_u32_u24 v9, 768, v2\nv_mul_u32_u24 v10, 48, v3\nv_add_u32 v9, v9, v10')
    T = 48
    for s in range(9):
        r = 12 + 4*s; d = T if s == 0 else T + 8
        a(f's_waitcnt vmcnt({8-s})')
        for k in range(4): a(f'v_lshlrev_b32 v{d+2*k}, 16, v{r+k}\nv_and_b32 v{d+2*k+1}, s42, v{r+k}')
        if s:
            for k in range(4): a(f'v_pk_add_f32 {vr(T+2*k,2)}, {vr(T+2*k,2)}, {vr(T+8+2*k,2)}')
    for k in range(4): a(f'v_cvt_pk_bf16_f32 v{12+k}, v{T+2*k}, v{T+2*k+1}')
    a(f'buffer_store_dwordx4 {vr(12)}, v9, s[12:15], s44 offen')
    end(n, 64, 384, 192, 0)

k1(); k2(); k3(); k4(); k5()
hdr = open('standalone__video_videomae__vision.s.ref').read().split('; Override')[0]
out = hdr
for name, nv, th, nwg, lds in kernels: out += f'; @launch kernel={name} grid=({nwg},1,1) block=({th},1,1) lds={lds}\n'
out += '.amdgcn_target "amdgcn-amd-amdhsa--gfx950"\n.text\n' + a.text() + '.section .rodata,"a"\n'
for name, nv, th, nwg, lds in kernels:
    out += f'''.p2align 6
.amdhsa_kernel {name}
  .amdhsa_next_free_vgpr {nv}
  .amdhsa_next_free_sgpr 72
  .amdhsa_accum_offset {nv}
  .amdhsa_group_segment_fixed_size 0
  .amdhsa_kernarg_size 80
  .amdhsa_user_sgpr_count 2
  .amdhsa_user_sgpr_kernarg_segment_ptr 1
  .amdhsa_system_sgpr_workgroup_id_x 1
.end_amdhsa_kernel
'''
open(sys.argv[1] if len(sys.argv) > 1 else 'v1.s', 'w').write(out)
```

```python
import sys, math, struct
from emit import Asm
S = 1179648
P1, KF, VF, P2, P3, WQ, WP, W1P, W2P, FLG = 0, 6*S, 7*S, 8*S, 13*S, 21*S, 22*S, 23*S, 24*S, 25*S
F1, F2K, F2V, F3, F4, FRQ, FR1, FRP, FR2, EPO = [FLG + 128*x for x in (0, 72, 264, 360, 936, 1512, 1524, 1536, 1548, 1560)]
WSN = 26*S
def f2u(x): return struct.unpack('<I', struct.pack('<f', x))[0]
SC = (96 ** -0.5) * math.log2(math.e)
MF = 'v_mfma_f32_16x16x32_bf16'
def vr(a, n=4): return f'v[{a}:{a+n-1}]'
a = Asm()
DIAG = '--diag' in sys.argv
SEL = 56 + 77
NRP = 56
lab = [0]
def L(): lab[0] += 1; return f'L{lab[0]}'
def stamp(i):
    if DIAG: a(f's_memtime s[66:67]\ns_waitcnt lgkmcnt(0)\ns_sub_u32 s{70+i}, s66, s68')
def finish(n):
    if DIAG:
        a('s_waitcnt vmcnt(0)'); stamp(n)
        l = L()
        a(f's_cmp_lg_u32 s2, {SEL}\ns_cbranch_scc1 {l}\ns_lshl_b32 s44, s3, 7\ns_add_u32 s44, s44, {FLG + 0x40000}\nv_mov_b32 v1, 0')
        for i in range(n + 1): a(f'v_mov_b32 v2, s{70+i}\nbuffer_store_dword v2, v1, s[8:11], s44 offen offset:{4*i}')
        a.label(l)
    a('s_endpgm')
def srd(d, p, nb): a(f's_mov_b32 s{d}, s{p}\ns_mov_b32 s{d+1}, s{p+1}\ns_mov_b32 s{d+2}, {nb}\ns_mov_b32 s{d+3}, 0x20000')
def sdiv(dst, src, d): a(f's_mul_i32 s{dst}, s{src}, {65536 // d + 1}\ns_lshr_b32 s{dst}, s{dst}, 16')
def sdivmod(q, r, src, d): sdiv(q, src, d); a(f's_mul_i32 s{r}, s{q}, {d}\ns_sub_u32 s{r}, s{src}, s{r}')
def lin_loads(regs, sbase, first=0):
    for n, r in enumerate(regs):
        i = first + n
        if n == 0 or i % 4 == 0: a(f's_add_u32 s44, s{sbase}, {(i // 4) * 4096}')
        a(f'buffer_load_dwordx4 {vr(r)}, v4, s[8:11], s44 offen offset:{(i % 4) * 1024} sc1')
def greduce(v, t, op):
    a(f'v_mov_b32 v{t}, v{v}\nv_permlane32_swap_b32 v{v}, v{t}\n{op} v{v}, v{v}, v{t}')
    a(f'v_mov_b32 v{t}, v{v}\nv_permlane16_swap_b32 v{v}, v{t}\n{op} v{v}, v{v}, v{t}')
def greduce_n(vs, t, op):
    for sw in ('32', '16'):
        for k, v in enumerate(vs): a(f'v_mov_b32 v{t+k}, v{v}')
        for k, v in enumerate(vs): a(f'v_permlane{sw}_swap_b32 v{v}, v{t+k}')
        for k, v in enumerate(vs): a(f'{op} v{v}, v{v}, v{t+k}')
def xred_write(v, n, t, op, off):
    greduce_n(list(range(v, v+n)), t, op)
    a(f'ds_write_b{32*n} v{6 if n == 4 else 8}, {vr(v, n)} offset:{off}')
def xred_read(v, n, t, op, off):
    for k in range(3): a(f'ds_read_b{32*n} {vr(t + n*k, n)}, v{7 if n == 4 else 9} offset:{off + 4*n*k}')
    a('s_waitcnt lgkmcnt(0)')
    for k in range(n):
        if op == 'v_max_f32': a(f'v_max3_f32 v{v+k}, v{t+k}, v{t+n+k}, v{t+2*n+k}')
        else: a(f'v_add_f32 v{v+k}, v{t+k}, v{t+n+k}\nv_add_f32 v{v+k}, v{v+k}, v{t+2*n+k}')
    greduce_n(list(range(v, v+n)), t, op)
def poll(va):
    l, d = L(), L()
    a('s_mov_b32 s45, 0x8000'); a.label(l)
    a(f'buffer_load_dword v11, v{va}, s[8:11], 0 offen sc1\ns_waitcnt vmcnt(0)\nv_cmp_ne_u32 vcc, s43, v11\ns_nop 1\ns_cbranch_vccz {d}')
    a(f's_sub_u32 s45, s45, 1\ns_cbranch_scc1 {d}\ns_sleep 1\ns_branch {l}'); a.label(d)
def flag_addr(va, groups):
    g0 = groups[0]
    a(f'v_min_u32 v{va}, {g0[1]-1}, v2\nv_lshl_add_u32 v{va}, v{va}, 2, s{g0[0]}')
    for k, (sb, n) in enumerate(groups[1:], 1):
        a(f'v_min_u32 v11, {n-1}, v2\nv_lshl_add_u32 v11, v11, 2, s{sb}\nv_cmp_eq_u32 vcc, {k}, v3\nv_cndmask_b32 v{va}, v{va}, v11, vcc')
def publish(sf):
    a(f'v_mov_b32 v11, s43\nv_mov_b32 v10, 0\ns_waitcnt vmcnt(0)\ns_mov_b64 exec, 1\nbuffer_store_dword v11, v10, s[8:11], s{sf} offen sc1\ns_mov_b64 exec, -1')
def unpack(dl, dh, r):
    for k in range(4): a(f'v_lshlrev_b32 v{dl+k}, 16, v{r+k}\nv_and_b32 v{dh+k}, s42, v{r+k}')
def addsrc(X, r, T):
    unpack(T, T+4, r)
    for q in range(2):
        for k in (0, 2): a(f'v_pk_add_f32 {vr(X[q]+k,2)}, {vr(X[q]+k,2)}, {vr(T+4*q+k,2)}')
def packx(d, X):
    for k in range(4): a(f'v_cvt_pk_bf16_f32 v{d+k}, v{X[0]+k}, v{X[1]+k}')
HL, ST, OL, QL, PL, EX = 0, 24576, 28672, 34816, 40960, 65536
MX, SM, GL, QK = ST, ST + 1536, PL, HL
XR = 12
def ln_tail(X, T):
    s = T + 12
    for t in range(2):
        p = [vr(X[t][q]+k, 2) for q in range(2) for k in (0, 2)]
        a(f'v_pk_add_f32 {vr(T,2)}, {p[0]}, {p[1]}\nv_pk_mul_f32 {vr(T+2,2)}, {p[0]}, {p[0]}\nv_pk_add_f32 {vr(T,2)}, {vr(T,2)}, {p[2]}')
        a(f'v_pk_fma_f32 {vr(T+2,2)}, {p[1]}, {p[1]}, {vr(T+2,2)}\nv_pk_add_f32 {vr(T,2)}, {vr(T,2)}, {p[3]}')
        a(f'v_pk_fma_f32 {vr(T+2,2)}, {p[2]}, {p[2]}, {vr(T+2,2)}\nv_pk_fma_f32 {vr(T+2,2)}, {p[3]}, {p[3]}, {vr(T+2,2)}')
        a(f'v_add_f32 v{s+2*t}, v{T}, v{T+1}\nv_add_f32 v{s+2*t+1}, v{T+2}, v{T+3}')
    xred_write(s, 4, T, 'v_add_f32', ST)
    a('s_waitcnt lgkmcnt(0)\ns_barrier')
    xred_read(s, 4, T, 'v_add_f32', ST)
    for t in range(2):
        m, q = s + 2*t, s + 2*t + 1
        a(f'v_mul_f32 v{m}, {hex(f2u(1/384))}, v{m}\nv_mul_f32 v{q}, {hex(f2u(1/384))}, v{q}\nv_fma_f32 v{q}, -v{m}, v{m}, v{q}')
        a(f'v_max_f32 v{q}, 0, v{q}\nv_add_f32 v{q}, {hex(f2u(1e-5))}, v{q}\nv_rsq_f32 v{q}, v{q}\nv_mul_f32 v{m}, -v{m}, v{q}')
    for t in range(2):
        for q in range(2):
            for k in (0, 2):
                p = vr(X[t][q]+k, 2)
                a(f'v_pk_fma_f32 {p}, {p}, {vr(s+2*t,2)}, {vr(s+2*t,2)} op_sel:[0,1,0] op_sel_hi:[1,1,0]')
        packx(T + 4*t, X[t])
        a(f'ds_write_b128 v5, {vr(T+4*t)} offset:{HL + t*12288}')
    a('s_waitcnt lgkmcnt(0)\ns_barrier')
def gemm(nk, nf, Wr, B, acc, swap, boff, tstride, vm=None, post=None):
    def rd(k):
        for t in range(2): a(f'ds_read_b128 {vr(B + 4*((k%2)*2 + t))}, v4 offset:{boff + t*tstride + k*1024}')
    rd(0)
    for k in range(nk):
        if k + 1 < nk: rd(k + 1)
        a(f's_waitcnt lgkmcnt({2 if k+1 < nk else 0})' + (f' vmcnt({vm(k)})' if vm else ''))
        for f in range(nf):
            for t in range(2):
                w = vr(Wr[k*nf + f]); b = vr(B + 4*((k%2)*2 + t)); c = vr(acc + 4*(f*2 + t))
                x, y = (b, w) if swap else (w, b)
                a(f'{MF} {c}, {x}, {y}, {c if k else 0}')
        if post: post(k)
def perms(raw, stride, w, dst):
    for f in range(2*w):
        m, p = f >> 1, f & 1
        for d in range(4): a(f'v_perm_b32 v{dst + 4*f + d}, v{raw + (2*d+1)*stride + m}, v{raw + 2*d*stride + m}, s{40+p}')
def scol(dst, k):
    a(f's_mul_i32 s{dst}, s{k}, 11\ns_lshr_b32 s{dst}, s{dst}, 5\ns_mul_i32 s{dst}, s{dst}, 144\ns_lshl_b32 s45, s{k}, 4\ns_add_u32 s{dst}, s{dst}, s45')
NAME = 'standalone__video_videomae__vision_kernel'
a.raw(f'.globl {NAME}\n.p2align 8\n.type {NAME},@function\n{NAME}:')
if DIAG: a('s_memtime s[68:69]')
a(f's_cmp_ge_u32 s2, {NRP+192}\ns_cbranch_scc1 the_end')
a('s_load_dwordx16 s[48:63], s[0:1], 0\ns_load_dwordx2 s[8:9], s[0:1], 72')
a('v_lshrrev_b32 v5, 6, v0\nv_and_b32 v1, 63, v0\nv_readfirstlane_b32 s3, v5\nv_and_b32 v2, 15, v0\nv_bfe_u32 v3, v0, 4, 2\nv_lshlrev_b32 v4, 4, v1')
a(f's_mov_b32 s10, {WSN}\ns_mov_b32 s11, 0x20000\ns_mov_b32 s40, 0x05040100\ns_mov_b32 s41, 0x07060302\ns_mov_b32 s42, 0xffff0000')
a(f's_cmp_lt_u32 s2, {NRP}\ns_cbranch_scc1 repack')
a(f's_sub_u32 s46, s2, {NRP}\ns_and_b32 s47, s46, 7\ns_lshr_b32 s46, s46, 3\ns_and_b32 s4, s46, 3\ns_lshr_b32 s5, s47, 1\ns_and_b32 s44, s47, 1')
a('s_mul_i32 s6, s44, 6\ns_lshr_b32 s45, s46, 2\ns_add_u32 s6, s6, s45\ns_lshl_b32 s7, s5, 2\ns_add_u32 s7, s7, s4')
a('s_mov_b32 s28, s5\ns_lshl_b32 s29, s46, 1\ns_add_u32 s29, s29, s44\ns_mul_i32 s30, s5, 12\ns_add_u32 s30, s30, s6\ns_lshl_b32 s31, s30, 1')
scol(32, 3)
a('v_and_b32 v10, 3, v2\nv_mul_u32_u24 v10, 384, v10\nv_lshrrev_b32 v11, 2, v2\ns_lshl_b32 s44, s29, 3\nv_add3_u32 v10, v10, v11, s44\nv_mul_u32_u24 v10, 768, v10')
a('v_mul_u32_u24 v11, 48, v3\nv_add_u32 v10, v10, v11\nv_mul_u32_u24 v9, 768, v2\nv_add_u32 v9, v9, v11')
a('s_mul_i32 s33, s31, 12288\ns_add_u32 s33, s33, s32\ns_add_u32 s34, s33, 12288')
a('s_waitcnt lgkmcnt(0)')
a(f's_add_u32 s46, s8, {EPO}\ns_addc_u32 s47, s9, 0\ns_load_dword s43, s[46:47], 0')
srd(12, 48, S); srd(16, 50, 884736); srd(20, 52, 294912); srd(24, 62, S)
stamp(0)
a(f'buffer_load_dwordx4 {vr(20)}, v10, s[12:15], s32 offen\nbuffer_load_dwordx4 {vr(24)}, v10, s[12:15], s32 offen offset:3072')
def common_addrs():
    a(f'buffer_load_dwordx4 {vr(XR)}, v9, s[12:15], s33 offen\nbuffer_load_dwordx4 {vr(XR+4)}, v9, s[12:15], s34 offen')
    a('v_mov_b32 v0, v9\ns_lshl_b32 s44, s3, 10\nv_add_u32 v5, s44, v4')
    a('v_mul_u32_u24 v7, 192, v2\ns_lshl_b32 s44, s3, 4\nv_add_u32 v6, s44, v7\nv_lshrrev_b32 v8, 1, v6\nv_mad_u32_u24 v7, v3, 48, v7\nv_lshrrev_b32 v9, 1, v7')
def ln1(after):
    X = [(28, 32), (36, 40)]
    for t in range(2):
        a(f's_waitcnt vmcnt({after + 1 - t})'); unpack(X[t][0], X[t][1], 20 + 4*t)
    ln_tail(X, 44)
    a('s_add_u32 s43, s43, 1')
a('s_cmp_ge_u32 s3, 6\ns_cbranch_scc1 k1_proj')
sdivmod(35, 36, 3, 3)
RING, FR, B, ACC = 104, 72, 96, 20
a('v_mul_u32_u24 v68, 55296, v3\nv_mul_u32_u24 v69, 12, v2\ns_mul_i32 s44, s36, 768\ns_mul_i32 s45, s28, 192\ns_add_u32 s44, s44, s45\ns_mul_i32 s45, s35, 442368\ns_add_u32 s44, s44, s45\nv_add3_u32 v68, v68, v69, s44')
for q in range(1, 4): a(f'v_add_u32 v{68+q}, {q*4608}, v68')
def wl(k):
    a(f's_mov_b32 s44, {(96*(k//3) + 8*(k%3))*2304}')
    for j in range(8): a(f'buffer_load_dwordx3 {vr(RING + (k%2)*32 + 4*j, 3)}, v{68 + j//2}, s[16:19], s44 offen offset:{(j&1)*2304}')
wl(0); wl(1); common_addrs(); ln1(18); stamp(1)
a('s_mul_i32 s44, s35, 18432\nv_add_u32 v10, s44, v4\ns_mul_i32 s44, s35, 6144\ns_sub_u32 s44, 12288, s44\nv_add_u32 v11, s44, v4')
for role in ('qk', 'v'):
    if role == 'qk': a('s_cmp_eq_u32 s36, 2\ns_cbranch_scc1 k1_v')
    else: a.label('k1_v')
    for k in range(6):
        for t in range(2): a(f'ds_read_b128 {vr(B + 4*t)}, v{10+t} offset:{HL + k*1024}')
        a(f's_waitcnt vmcnt({(10 if k == 0 else 8) if k < 5 else 0})')
        perms(RING + (k%2)*32, 4, 3, FR)
        if k + 2 < 6: wl(k + 2)
        a('s_waitcnt lgkmcnt(0)')
        for f in range(6):
            for t in range(2):
                w = vr(FR + 4*f); b = vr(B + 4*t); c = vr(ACC + 4*(f*2 + t))
                x, y = (b, w) if role == 'v' else (w, b)
                a(f'{MF} {c}, {x}, {y}, {c if k else 0}')
    stamp(2)
    a(f's_lshl_b32 s44, s36, 1\ns_add_u32 s44, s44, s35\ns_mul_i32 s46, s44, 3072\ns_mul_i32 s45, s44, 6144\ns_add_u32 s45, s45, {EX}\nv_add_u32 v10, s45, v4\ns_xor_b32 s44, s44, 1\ns_mul_i32 s45, s44, 6144\ns_add_u32 s45, s45, {EX}\nv_add_u32 v11, s45, v4')
    for f in range(6): a(f'ds_write_b128 v11, {vr(ACC + 8*f + 4)} offset:{f*1024}')
    a('s_waitcnt lgkmcnt(0)\ns_barrier')
    for f in range(6): a(f'ds_read_b128 {vr(ACC + 8*f + 4)}, v10 offset:{f*1024}')
    a('v_add_u32 v10, s46, v4')
    for f in range(6):
        a(f's_waitcnt lgkmcnt({5-f})')
        for k in (0, 2): a(f'v_pk_add_f32 {vr(ACC+8*f+k,2)}, {vr(ACC+8*f+k,2)}, {vr(ACC+8*f+4+k,2)}')
    if role == 'qk':
        for r in range(4):
            for f in (0, 2, 4): a(f'v_cvt_pk_bf16_f32 v{FR + 3*r + f//2}, v{ACC + 8*f + r}, v{ACC + 8*(f+1) + r}')
        for i in range(3): a(f'ds_write_b128 v10, {vr(FR + 4*i)} offset:{QK + i*1024}')
        a('s_waitcnt lgkmcnt(0)\ns_barrier\ns_barrier\ns_branch k2_pre')
    else:
        for f in range(6):
            c = ACC + 8*f
            a(f'v_cvt_pk_bf16_f32 v{FR+4*f}, v{c}, v{c+1}\nv_cvt_pk_bf16_f32 v{FR+4*f+1}, v{c+2}, v{c+3}\nv_mov_b32 v{FR+4*f+2}, 0\nv_mov_b32 v{FR+4*f+3}, 0')
        a(f'v_lshrrev_b32 v11, 2, v2\nv_cmp_eq_u32 vcc, v11, v3\ns_mov_b32 s44, {hex(f2u(SC))}\nv_mov_b32 v102, 0\nv_mov_b32 v103, 0\ns_mul_i32 s46, s35, 3072\nv_add_u32 v10, s46, v4\ns_barrier')
        for i in range(3): a(f'ds_read_b128 {vr(RING + 8*i)}, v10 offset:{QK + i*1024}\nds_read_b128 {vr(RING + 8*i + 4)}, v10 offset:{QK + 6144 + i*1024}')
        c, m = 96, 68
        for i in range(3): a(f's_waitcnt lgkmcnt({4-2*i})\n{MF} {vr(c)}, {vr(RING + 8*i + 4)}, {vr(RING + 8*i)}, {vr(c) if i else 0}')
        a(f'v_max3_f32 v{m}, v{c}, v{c+1}, v{c+2}\nv_max_f32 v{m}, v{m}, v{c+3}\nv_mul_f32 v{m}, s44, v{m}')
        for r in range(4): a(f'v_fma_f32 v{c+r}, v{c+r}, s44, -v{m}')
        for r in range(4): a(f'v_exp_f32 v{c+r}, v{c+r}')
        a(f'v_add_f32 v{m}, v{c}, v{c+1}\nv_add_f32 v{m+1}, v{c+2}, v{c+3}\nv_add_f32 v{m}, v{m}, v{m+1}\nv_rcp_f32 v{m}, v{m}')
        for r in range(4): a(f'v_mul_f32 v{c+r}, v{c+r}, v{m}')
        a(f'v_cvt_pk_bf16_f32 v100, v{c}, v{c+1}\nv_cvt_pk_bf16_f32 v101, v{c+2}, v{c+3}\nv_cndmask_b32 v100, 0, v100, vcc\nv_cndmask_b32 v101, 0, v101, vcc')
        for f in range(6): a(f'{MF} {vr(ACC + 4*f)}, {vr(FR + 4*f)}, {vr(100)}, 0')
        for r in range(4):
            for f in (0, 2, 4): a(f'v_cvt_pk_bf16_f32 v{RING + 3*r + f//2}, v{ACC + 4*f + r}, v{ACC + 4*(f+1) + r}')
        for i in range(3): a(f'ds_write_b128 v10, {vr(RING + 4*i)} offset:{OL + i*1024}')
        a('s_waitcnt lgkmcnt(0)\ns_barrier')
a.label('k2_pre'); stamp(3)
a(f's_lshl_b32 s46, s35, 2\ns_add_u32 s46, s46, s4\ns_lshl_b32 s46, s46, 7\ns_add_u32 s46, s46, {FRQ}')
flag_addr(10, [(46, 12)]); poll(10)
a(f's_mul_i32 s46, s4, 6\ns_add_u32 s46, s46, s3\ns_mul_i32 s46, s46, 24576\ns_add_u32 s46, s46, {WQ}')
W2K = [72 + 4*i for i in range(24)]
lin_loads(W2K, 46)
a('s_branch k2')
a.label('k1_proj'); a.hist = []
a('s_sub_u32 s35, s3, 6\ns_lshl_b32 s44, s35, 1\nv_bfe_u32 v68, v2, 1, 1\nv_add_u32 v68, s44, v68\nv_mul_u32_u24 v69, 11, v68\nv_lshrrev_b32 v69, 5, v69\nv_mul_u32_u24 v69, 144, v69')
a('v_lshl_add_u32 v68, v68, 4, v69\nv_lshrrev_b32 v69, 2, v2\nv_mul_u32_u24 v69, 48, v69\nv_and_b32 v70, 1, v2\nv_lshlrev_b32 v70, 3, v70\nv_add3_u32 v68, v68, v69, v70')
a('v_mul_u32_u24 v69, 18432, v3\nv_add_u32 v68, v68, v69\nv_add_u32 v69, 3072, v68\ns_mul_i32 s46, s28, 73728')
common_addrs(); ln1(2); stamp(1)
RAW, FR = 120, 72
for i in range(3):
    a(f's_add_u32 s44, s46, {i*6144}')
    for j in range(8): a(f'buffer_load_dwordx2 {vr(RAW + 16*i + 2*j, 2)}, v{68 + j//4}, s[20:23], s44 offen offset:{(j&3)*768}')
a('v_and_b32 v70, 3, v2\nv_mul_u32_u24 v70, 294912, v70\nv_lshrrev_b32 v71, 2, v2\nv_lshl_add_u32 v71, v3, 4, v71\nv_lshl_add_u32 v70, v71, 4, v70')
a(f's_lshr_b32 s36, s29, 1\ns_mul_i32 s36, s36, 12288\ns_and_b32 s44, s29, 1\ns_lshl_b32 s44, s44, 7\ns_add_u32 s36, s36, s44\ns_mul_i32 s44, s28, {S}\ns_add_u32 s36, s36, s44\ns_lshl_b32 s44, s35, 11\ns_add_u32 s36, s36, s44')
a(f's_lshr_b32 s37, s29, 2\ns_mul_i32 s37, s37, 6\ns_add_u32 s37, s37, s35\ns_lshl_b32 s37, s37, 7\ns_and_b32 s44, s29, 3\ns_lshl_b32 s44, s44, 4\ns_add_u32 s37, s37, s44\ns_lshl_b32 s44, s28, 2\ns_add_u32 s37, s37, s44\ns_add_u32 s37, s37, {F1}')
for i in range(3):
    a(f's_waitcnt vmcnt({8*(2-i)})'); perms(RAW + 16*i, 2, 2, FR + 16*i)
stamp(2)
a(f's_barrier\ns_lshl_b32 s46, s4, 7\ns_add_u32 s46, s46, {FRQ + 8*128}')
flag_addr(10, [(46, 12)]); poll(10)
a(f's_mul_i32 s46, s4, 6\ns_add_u32 s46, s46, s35\ns_mul_i32 s46, s46, 12288\ns_add_u32 s46, s46, {WQ + 24*24576}\ns_barrier')
W2V = [120 + 4*i for i in range(12)]
a('s_barrier'); stamp(3)
gemm(3, 4, [FR + 4*i for i in range(12)], 52, 20, False, OL, 3072)
for t in range(2):
    for rho in range(2):
        d = 52 + 4*(t*2+rho); A_ = lambda f, r: f'v{20 + 4*(f*2 + t) + r}'
        a(f'v_cvt_pk_bf16_f32 v{d}, {A_(0,2*rho)}, {A_(1,2*rho)}\nv_cvt_pk_bf16_f32 v{d+1}, {A_(2,2*rho)}, {A_(3,2*rho)}')
        a(f'v_cvt_pk_bf16_f32 v{d+2}, {A_(0,2*rho+1)}, {A_(1,2*rho+1)}\nv_cvt_pk_bf16_f32 v{d+3}, {A_(2,2*rho+1)}, {A_(3,2*rho+1)}')
        a(f'buffer_store_dwordx4 {vr(d)}, v70, s[8:11], s36 offen offset:{rho*1024 + t*64} sc1')
publish(37)
lin_loads(W2V, 46)
a.label('k2'); a.fence(); stamp(4)
a(f's_mul_i32 s46, s6, 6\ns_lshr_b32 s44, s3, 1\ns_add_u32 s46, s46, s44\ns_lshl_b32 s46, s46, 7\ns_add_u32 s46, s46, {F1}')
a('s_mul_i32 s38, s31, 12288\ns_lshl_b32 s44, s3, 10\ns_add_u32 s38, s38, s44')
flag_addr(10, [(46, 16)]); poll(10); stamp(5)
for t in range(2):
    for s in range(4): a(f's_add_u32 s44, s38, {P1 + s*S + t*12288}\nbuffer_load_dwordx4 {vr(20 + 16*t + 4*s)}, v4, s[8:11], s44 offen sc1')
X = [(52, 56), (20, 24)]
for t in range(2):
    unpack(X[t][0], X[t][1], XR + 4*t)
    for s in range(4):
        a(f's_waitcnt vmcnt({7 - 4*t - s})'); addsrc(X[t], 20 + 16*t + 4*s, 60)
    packx(XR + 4*t, X[t]); unpack(X[t][0], X[t][1], XR + 4*t)
stamp(6)
ln_tail(X, 28); stamp(7)
a('s_cmp_ge_u32 s3, 6\ns_cbranch_scc1 k2_v')
gemm(12, 2, W2K, 20, 36, False, HL, 12288); stamp(8)
for t in range(2):
    for p in range(2):
        c = 36 + 4*(p*2+t); a(f'v_cvt_pk_bf16_f32 v{52+4*t+2*p}, v{c}, v{c+1}\nv_cvt_pk_bf16_f32 v{53+4*t+2*p}, v{c+2}, v{c+3}')
a('s_cmp_ge_u32 s3, 3\ns_cbranch_scc1 k2_k')
for t in range(2): a(f'ds_write_b128 v5, {vr(52+4*t)} offset:{QL + t*3072}')
a('s_branch k3'); a.label('k2_k')
a(f's_mul_i32 s46, s7, 12\ns_add_u32 s46, s46, s6\ns_mul_i32 s44, s46, 6144\ns_lshl_b32 s45, s36, 10\ns_add_u32 s44, s44, s45\ns_add_u32 s44, s44, {KF}')
for t in range(2): a(f'buffer_store_dwordx4 {vr(52+4*t)}, v4, s[8:11], s44 offen offset:{t*3072} sc1')
a(f's_lshl_b32 s46, s46, 7\ns_lshl_b32 s45, s36, 2\ns_add_u32 s46, s46, s45\ns_add_u32 s46, s46, {F2K}')
publish(46)
a('s_branch k3'); a.label('k2_v'); a.hist = []
gemm(12, 1, W2V, 20, 36, True, HL, 12288); stamp(8)
for t in range(2):
    c = 36 + 4*t; a(f'v_cvt_pk_bf16_f32 v{52+2*t}, v{c}, v{c+1}\nv_cvt_pk_bf16_f32 v{53+2*t}, v{c+2}, v{c+3}')
a(f's_mul_i32 s46, s7, 6\ns_add_u32 s46, s46, s35\ns_mul_i32 s44, s46, 12\ns_add_u32 s44, s44, s6\ns_lshl_b32 s44, s44, 10\ns_add_u32 s44, s44, {VF}')
a(f'buffer_store_dwordx4 {vr(52)}, v4, s[8:11], s44 offen sc1')
a(f's_lshl_b32 s46, s46, 7\ns_lshl_b32 s45, s6, 2\ns_add_u32 s46, s46, s45\ns_add_u32 s46, s46, {F2V}')
publish(46)
a.label('k3'); a.fence(); stamp(9)
a(f's_lshl_b32 s46, s3, 7\ns_add_u32 s47, s46, {FR2}\ns_mul_i32 s44, s4, 24\ns_add_u32 s47, s47, s44\ns_add_u32 s46, s46, {FRP}')
a(f's_mul_i32 s39, s4, 12\ns_add_u32 s39, s39, s3\ns_lshr_b32 s64, s39, 2\ns_lshl_b32 s64, s64, 7\ns_add_u32 s64, s64, {FR1}')
flag_addr(10, [(46, 6), (47, 6), (64, 12)]); poll(10)
a(f's_mul_i32 s46, s39, 6144\ns_add_u32 s46, s46, {WP}')
WPR = [144 + 4*i for i in range(6)]
lin_loads(WPR, 46)
a(f's_mul_i32 s39, s39, 24576\ns_add_u32 s65, s39, {W2P}\ns_add_u32 s39, s39, {W1P}')
a(f's_mul_i32 s46, s7, 12\ns_add_u32 s46, s46, s3\ns_mul_i32 s36, s46, 6144\ns_add_u32 s36, s36, {KF}\ns_lshl_b32 s46, s46, 7\ns_add_u32 s46, s46, {F2K}')
a(f's_min_u32 s44, s3, 5\ns_mul_i32 s47, s7, 6\ns_add_u32 s47, s47, s44\ns_mul_i32 s37, s47, 12288\ns_add_u32 s37, s37, {VF}\ns_lshl_b32 s47, s47, 7\ns_add_u32 s47, s47, {F2V}')
a('s_cmp_ge_u32 s3, 6\ns_cselect_b32 s47, s46, s47\ns_cselect_b32 s37, s39, s37\ns_cselect_b32 s44, 2, 11')
a('v_min_u32 v10, 2, v2\nv_lshl_add_u32 v10, v10, 2, s46\nv_min_u32 v11, s44, v2\nv_lshl_add_u32 v11, v11, 2, s47\nv_cmp_eq_u32 vcc, 1, v3\nv_cndmask_b32 v10, v10, v11, vcc')
a('s_waitcnt lgkmcnt(0)\ns_barrier')
K, Q, SA, T, V = 20, 44, 68, 84, 96
for i in range(6): a(f'ds_read_b128 {vr(Q + 4*i)}, v4 offset:{QL + i*1024}')
poll(10); stamp(10)
lin_loads([K + 4*i for i in range(6)], 36)
lin_loads([V + 4*i for i in range(12)], 37)
a(f's_mov_b32 s64, {hex(f2u(SC))}\ns_waitcnt lgkmcnt(0)')
for tau in range(2):
    a(f's_waitcnt vmcnt({12 + 3*(1-tau)})')
    for i in range(3):
        for u in range(2):
            c = vr(SA + 4*(u*2+tau)); a(f'{MF} {c}, {vr(K + 4*(tau*3+i))}, {vr(Q + 4*(u*3+i))}, {c if i else 0}')
stamp(11)
M = 92
for u in range(2):
    e = SA + 8*u
    a(f'v_max3_f32 v{M+u}, v{e}, v{e+1}, v{e+2}\nv_max3_f32 v{M+u}, v{M+u}, v{e+3}, v{e+4}\nv_max3_f32 v{M+u}, v{M+u}, v{e+5}, v{e+6}\nv_max_f32 v{M+u}, v{M+u}, v{e+7}')
xred_write(M, 2, T, 'v_max_f32', MX)
a('s_lshl_b32 s44, s3, 11\nv_add_u32 v10, s44, v4\ns_waitcnt lgkmcnt(0)\ns_barrier')
xred_read(M, 2, T, 'v_max_f32', MX)
for u in range(2): a(f'v_mul_f32 v{M+u}, s64, v{M+u}')
for u in range(2):
    e = SA + 8*u
    for k in range(8): a(f'v_fma_f32 v{e+k}, v{e+k}, s64, -v{M+u}')
    for k in range(8): a(f'v_exp_f32 v{e+k}, v{e+k}')
    for k in range(4): a(f'v_cvt_pk_bf16_f32 v{T+4*u+k}, v{e+2*k}, v{e+2*k+1}')
    a(f'ds_write_b128 v10, {vr(T+4*u)} offset:{PL + u*1024}')
    a(f'v_pk_add_f32 {vr(e,2)}, {vr(e,2)}, {vr(e+2,2)}\nv_pk_add_f32 {vr(e+4,2)}, {vr(e+4,2)}, {vr(e+6,2)}\nv_pk_add_f32 {vr(e,2)}, {vr(e,2)}, {vr(e+4,2)}\nv_add_f32 v{M+2+u}, v{e}, v{e+1}')
xred_write(M+2, 2, SA, 'v_add_f32', SM)
a('s_waitcnt lgkmcnt(0)\ns_barrier'); stamp(12)
a('s_cmp_ge_u32 s3, 6\ns_cbranch_scc1 k3_o')
PB = [20 + 4*(i % 12) for i in range(24)]
OA = 68
for i in range(12): a(f'ds_read_b128 {vr(PB[i])}, v4 offset:{PL + i*1024}')
for kb in range(12):
    nrd = min(24, 12 + 2*max(0, kb - 1))
    a(f's_waitcnt vmcnt({11 - kb}) lgkmcnt({nrd - 2*kb - 2})')
    for u in range(2):
        c = vr(OA + 4*u); a(f'{MF} {c}, {vr(V + 4*kb)}, {vr(PB[2*kb+u])}, {c if kb else 0}')
    if kb >= 1:
        for i in range(nrd, min(24, nrd + 2)): a(f'ds_read_b128 {vr(PB[i])}, v4 offset:{PL + i*1024}')
a('s_lshr_b32 s44, s3, 1\ns_lshl_b32 s44, s44, 10\ns_and_b32 s45, s3, 1\ns_lshl_b32 s45, s45, 3\ns_add_u32 s44, s44, s45\nv_add_u32 v10, s44, v4')
xred_read(M, 2, T, 'v_add_f32', SM)
for u in range(2): a(f'v_rcp_f32 v{M+u}, v{M+u}')
for u in range(2):
    c = OA + 4*u
    for r in range(4): a(f'v_mul_f32 v{c+r}, v{c+r}, v{M+u}')
    a(f'v_cvt_pk_bf16_f32 v{c}, v{c}, v{c+1}\nv_cvt_pk_bf16_f32 v{c+1}, v{c+2}, v{c+3}\nds_write_b64 v10, {vr(c,2)} offset:{OL + u*3072}')
a('s_waitcnt lgkmcnt(0)'); a.label('k3_o')
a('s_barrier'); stamp(13)
gemm(3, 2, WPR, 44, 68, False, OL, 3072)
X = [(68, 76), (72, 80)]
a(f's_mul_i32 s44, s4, {S}\ns_add_u32 s36, s38, s44\ns_add_u32 s44, s36, {P2}\ns_add_u32 s45, s44, 12288')
a(f's_mul_i32 s37, s30, 12\ns_add_u32 s37, s37, s3\ns_lshl_b32 s37, s37, 7\ns_add_u32 s46, s37, {F3}\ns_lshl_b32 s47, s4, 2\ns_add_u32 s47, s47, s46')
for t in range(2):
    packx(84 + 4*t, X[t]); a(f'buffer_store_dwordx4 {vr(84+4*t)}, v4, s[8:11], s{44+t} offen sc1')
publish(47); stamp(14)
W1R = [96 + 4*i for i in range(12)] + [20 + 4*i for i in range(12)]
a('s_cmp_ge_u32 s3, 6\ns_cbranch_scc1 k4_h')
lin_loads(W1R[:12], 39); a.label('k4_h')
lin_loads(W1R[12:], 39, 12)
def gather3(base):
    for t in range(2):
        for s in range(1, 4):
            a(f's_add_u32 s44, s4, {s}\ns_and_b32 s44, s44, 3\ns_mul_i32 s44, s44, {S}\ns_add_u32 s44, s44, s38\ns_add_u32 s44, s44, {base + t*12288}')
            a(f'buffer_load_dwordx4 {vr(144 + 12*t + 4*(s-1))}, v4, s[8:11], s44 offen sc1')
    for t in range(2):
        addsrc(X[t], XR + 4*t, 84)
        for s in range(3):
            a(f's_waitcnt vmcnt({5 - 3*t - s})'); addsrc(X[t], 144 + 12*t + 4*s, 84)
flag_addr(10, [(46, 4)]); poll(10); stamp(15)
gather3(P2)
for t in range(2): packx(XR + 4*t, X[t]); unpack(X[t][0], X[t][1], XR + 4*t)
stamp(16)
ln_tail(X, 144); stamp(17)
gemm(12, 2, W1R, 144, 68, False, HL, 12288, post=lambda k: lin_loads(W1R[2*k:2*k+2], 65, 2*k))
stamp(18)
ga = -2 * math.sqrt(2 / math.pi) * math.log2(math.e)
a(f's_mov_b32 s44, {hex(f2u(ga * 0.044715))}\nv_mov_b32 v10, {hex(f2u(ga))}')
for t in range(2):
    e = [68 + 4*(p*2+t) + r for p in range(2) for r in range(4)]
    T = 144 + 8*t
    for k, x in enumerate(e): a(f'v_mul_f32 v{T+k}, v{x}, v{x}')
    for k, x in enumerate(e): a(f'v_fma_f32 v{T+k}, v{T+k}, s44, v10')
    for k, x in enumerate(e): a(f'v_mul_f32 v{T+k}, v{T+k}, v{x}')
    for k, x in enumerate(e): a(f'v_exp_f32 v{T+k}, v{T+k}')
    for k, x in enumerate(e): a(f'v_add_f32 v{T+k}, 1.0, v{T+k}')
    for k, x in enumerate(e): a(f'v_rcp_f32 v{T+k}, v{T+k}')
    for k, x in enumerate(e): a(f'v_mul_f32 v{T+k}, v{T+k}, v{x}')
    for k in range(4): a(f'v_cvt_pk_bf16_f32 v{T+k}, v{T+2*k}, v{T+2*k+1}')
    a(f'ds_write_b128 v5, {vr(T)} offset:{GL + t*12288}')
a('s_waitcnt lgkmcnt(0)\ns_barrier'); stamp(19)
gemm(12, 2, W1R, 144, 68, False, GL, 12288, vm=lambda k: 22 - 2*k)
stamp(20)
a(f's_add_u32 s46, s37, {F4}\ns_lshl_b32 s47, s4, 2\ns_add_u32 s47, s47, s46')
sdiv(64, 3, 3)
a('s_cmp_eq_u32 s64, s4\ns_cbranch_scc1 k5_own')
a(f's_add_u32 s44, s36, {P3}\ns_add_u32 s45, s44, 12288')
for t in range(2):
    packx(84 + 4*t, X[t]); a(f'buffer_store_dwordx4 {vr(84+4*t)}, v4, s[8:11], s{44+t} offen sc1')
publish(47); finish(21)
a.label('k5_own'); a.fence()
publish(47)
flag_addr(10, [(46, 4)]); poll(10); stamp(21)
gather3(P3)
for t in range(2):
    packx(84 + 4*t, X[t]); a(f'buffer_store_dwordx4 {vr(84+4*t)}, v0, s[24:27], s{33+t} offen')
l = L()
a(f's_cmp_lg_u32 s2, {NRP}\ns_cbranch_scc1 {l}\ns_cmp_lg_u32 s3, 0\ns_cbranch_scc1 {l}\ns_mov_b32 s47, {EPO}')
publish(47); a.label(l)
finish(22)
a.label('repack'); a.hist = []
a('s_mul_i32 s4, s2, 12\ns_add_u32 s4, s4, s3\ns_cmp_ge_u32 s4, 648\ns_cbranch_scc1 the_end\ns_waitcnt lgkmcnt(0)')
a(f's_add_u32 s46, s8, {EPO}\ns_addc_u32 s47, s9, 0\ns_load_dword s43, s[46:47], 0')
a('s_cmp_ge_u32 s4, 288\ns_cbranch_scc1 rp2')
for which in (0, 1):
    if which == 0: a('s_cmp_ge_u32 s4, 144\ns_cbranch_scc1 rp1')
    else: a.label('rp1'); a('s_sub_u32 s4, s4, 144')
    ld, w = (2304, 3) if which == 0 else (3072, 4)
    srd(12, 54 if which == 0 else 58, 884736 if which == 0 else S)
    sdivmod(5, 6, 4, 12)
    a(f's_mul_i32 s44, s6, 11\ns_lshr_b32 s44, s44, 5\ns_mul_i32 s44, s44, 72\ns_lshl_b32 s45, s6, 3\ns_add_u32 s44, s44, s45\ns_mul_i32 s44, s44, {ld}\ns_mul_i32 s45, s5, {64*w}\ns_add_u32 s44, s44, s45')
    a(f'v_mul_u32_u24 v10, {24*ld}, v3\nv_mul_u32_u24 v11, {4*w}, v2\nv_add_u32 v10, v10, v11')
    for j in range(8): a(f'buffer_load_dwordx{w} {vr(16 + 4*j, w)}, v10, s[12:15], s44 offen\ns_add_u32 s44, s44, {ld}')
    a(f's_lshl_b32 s47, s5, 7\ns_lshl_b32 s45, s6, 2\ns_add_u32 s47, s47, s45\ns_add_u32 s47, s47, {FRQ if which == 0 else FR1}')
    if which == 0:
        a(f's_and_b32 s28, s5, 3\ns_mul_i32 s28, s28, 6\ns_lshr_b32 s29, s5, 2\ns_mul_i32 s44, s29, 3\ns_add_u32 s44, s44, s28\ns_mul_i32 s44, s44, 24576\ns_lshl_b32 s45, s6, 11\ns_add_u32 s44, s44, s45')
        a(f's_mul_i32 s30, s28, 12288\ns_lshl_b32 s45, s6, 10\ns_add_u32 s30, s30, s45\ns_add_u32 s30, s30, {24*24576}')
        a(f's_mov_b32 s33, 12288\ns_cmp_eq_u32 s29, 2\ns_cselect_b32 s44, s30, s44\ns_cselect_b32 s30, s33, 1024\ns_cselect_b32 s31, s33, 23552\ns_add_u32 s44, s44, {WQ}')
    else:
        a(f's_mul_i32 s44, s5, 98304\ns_lshl_b32 s45, s6, 11\ns_add_u32 s44, s44, s45\ns_add_u32 s44, s44, {W1P}\ns_mov_b32 s30, 1024\ns_mov_b32 s31, 23552')
    a('s_waitcnt vmcnt(0) lgkmcnt(0)\ns_add_u32 s43, s43, 1')
    perms(16, 4, w, 48)
    for f in range(2*w): a(f'buffer_store_dwordx4 {vr(48 + 4*f)}, v4, s[8:11], s44 offen sc1\ns_add_u32 s44, s44, s{30 + (f&1)}')
    publish(47); a('s_endpgm')
a.label('rp2'); a.hist = []
for which in (0, 1):
    if which == 0: a('s_cmp_ge_u32 s4, 360\ns_cbranch_scc1 rp3\ns_sub_u32 s4, s4, 288')
    else: a.label('rp3'); a('s_sub_u32 s4, s4, 360')
    srd(12, 56 if which == 0 else 60, 294912 if which == 0 else S)
    sdivmod(6, 5, 4, 12)
    scol(28, 5)
    a(f'v_lshrrev_b32 v10, 2, v2\nv_mul_u32_u24 v10, 48, v10\nv_and_b32 v11, 3, v2\nv_lshl_add_u32 v10, v11, 2, v10\nv_mul_u32_u24 v11, {(24 if which == 0 else 32)*768}, v3\nv_add3_u32 v10, v10, v11, s28')
    for b in range(2):
        a(f's_lshl_b32 s29, s6, 1\ns_add_u32 s29, s29, {b}')
        if which == 0:
            sdivmod(30, 31, 29, 3)
            a(f's_mul_i32 s46, s30, 96\ns_lshl_b32 s45, s31, 1\ns_add_u32 s46, s46, s45\ns_mul_i32 s{32+b}, s30, 12\ns_add_u32 s{32+b}, s{32+b}, s5\ns_mul_i32 s{32+b}, s{32+b}, 6144\ns_lshl_b32 s45, s31, 11\ns_add_u32 s{32+b}, s{32+b}, s45\ns_add_u32 s{32+b}, s{32+b}, {WP}')
        else:
            sdivmod(30, 31, 29, 12)
            a(f's_lshr_b32 s46, s29, 2\ns_lshl_b32 s46, s46, 7\ns_and_b32 s45, s29, 3\ns_lshl_b32 s45, s45, 1\ns_add_u32 s46, s46, s45\ns_mul_i32 s{32+b}, s30, 12\ns_add_u32 s{32+b}, s{32+b}, s5\ns_mul_i32 s{32+b}, s{32+b}, 24576\ns_lshl_b32 s45, s31, 11\ns_add_u32 s{32+b}, s{32+b}, s45\ns_add_u32 s{32+b}, s{32+b}, {W2P}')
        a('s_mul_i32 s46, s46, 768')
        for j in range(8):
            row = (6 if which == 0 else 8)*(j&3) + (j>>2)
            a(f's_add_u32 s44, s46, {row*768}\nbuffer_load_dword v{16 + 8*b + j}, v10, s[12:15], s44 offen')
    a(f's_lshl_b32 s47, s5, 7\ns_lshl_b32 s45, s6, 2\ns_add_u32 s47, s47, s45\ns_add_u32 s47, s47, {FRP if which == 0 else FR2}')
    a('s_waitcnt vmcnt(0) lgkmcnt(0)\ns_add_u32 s43, s43, 1')
    for b in range(2):
        perms(16 + 8*b, 1, 1, 32 + 8*b)
        for f in range(2): a(f'buffer_store_dwordx4 {vr(32 + 8*b + 4*f)}, v4, s[8:11], s{32+b} offen offset:{f*1024} sc1')
    publish(47); a('s_endpgm')
a.label('the_end'); a('s_endpgm')
hdr = open('standalone__video_videomae__vision.s.ref').read().split('; Override')[0]
out = hdr + f'; @launch grid=({NRP+192},1,1) block=(768,1,1) lds=102400\n.amdgcn_target "amdgcn-amd-amdhsa--gfx950"\n.text\n' + a.text() + f'''.section .rodata,"a"
.p2align 6
.amdhsa_kernel {NAME}
  .amdhsa_next_free_vgpr 168
  .amdhsa_next_free_sgpr 96
  .amdhsa_accum_offset 168
  .amdhsa_group_segment_fixed_size 0
  .amdhsa_kernarg_size 80
  .amdhsa_user_sgpr_count 2
  .amdhsa_user_sgpr_kernarg_segment_ptr 1
  .amdhsa_system_sgpr_workgroup_id_x 1
.end_amdhsa_kernel
'''
open(sys.argv[1], 'w').write(out)
```

```python
import sys, math, struct
from emit import Asm
S = 1179648
P1, KF, VF, P2, P3, WQ, WP, W1P, W2P, FLG = 0, 6*S, 7*S, 8*S, 13*S, 21*S, 21*S+884736, 22*S, 23*S, 25*S
F1, F2K, F2V, F3, F4, FRQ, FR1, FRP, FR2, EPO = [FLG + 128*x for x in (0, 72, 264, 360, 936, 1512, 1524, 1536, 1548, 1560)]
WSN = 26*S
def f2u(x): return struct.unpack('<I', struct.pack('<f', x))[0]
SC = (96 ** -0.5) * math.log2(math.e)
MF = 'v_mfma_f32_16x16x32_bf16'
def vr(a, n=4): return f'v[{a}:{a+n-1}]'
a = Asm()
DIAG = '--diag' in sys.argv
SL = int(sys.argv[sys.argv.index('--sl')+1]) if '--sl' in sys.argv else 3
SB = 0x100 if '--sb' in sys.argv else 0x10000
THR = '--thr' in sys.argv
NW = int(sys.argv[sys.argv.index('--nw')+1]) if '--nw' in sys.argv else 3
NL = int(sys.argv[sys.argv.index('--nl')+1]) if '--nl' in sys.argv else 4
GD = '--gd' in sys.argv
NPRE = int(sys.argv[sys.argv.index('--npre')+1]) if '--npre' in sys.argv else 2
TS = 64 if '--t64' in sys.argv else 128
SEL = 56 + 77
NRP = 56
lab = [0]
def L(): lab[0] += 1; return f'L{lab[0]}'
def stamp(i):
    if GD: a(f's_memrealtime s[66:67]\ns_waitcnt lgkmcnt(0)\ns_mov_b32 s{70+i}, s66')
    elif DIAG: a(f's_memtime s[66:67]\ns_waitcnt lgkmcnt(0)\ns_sub_u32 s{70+i}, s66, s98')
def finish(n):
    if DIAG:
        a('s_waitcnt vmcnt(0)'); stamp(n)
        l = L()
        a((f's_cmp_lg_u32 s3, {0 if n == 2 else 11}\ns_cbranch_scc1 {l}\ns_lshl_b32 s44, s2, 7\n' if GD else f's_cmp_lg_u32 s2, {SEL}\ns_cbranch_scc1 {l}\ns_lshl_b32 s44, s3, 7\n') + f's_add_u32 s44, s44, {FLG + 0x40000}\nv_mov_b32 v1, 0')
        for i in range(28): a(f'v_mov_b32 v2, s{70+i}\nbuffer_store_dword v2, v1, s[8:11], s44 offen offset:{4*i}')
        a.label(l)
    a('s_endpgm')
def srd(d, p, nb): a(f's_mov_b32 s{d}, s{p}\ns_mov_b32 s{d+1}, s{p+1}\ns_mov_b32 s{d+2}, {nb}\ns_mov_b32 s{d+3}, 0x20000')
def sdiv(dst, src, d): a(f's_mul_i32 s{dst}, s{src}, {65536 // d + 1}\ns_lshr_b32 s{dst}, s{dst}, 16')
def sdivmod(q, r, src, d): sdiv(q, src, d); a(f's_mul_i32 s{r}, s{q}, {d}\ns_sub_u32 s{r}, s{src}, s{r}')
def lin_loads(regs, sbase, first=0):
    for n, r in enumerate(regs):
        i = first + n
        if n == 0 or i % 4 == 0: a(f's_add_u32 s44, s{sbase}, {(i // 4) * 4096}')
        a(f'buffer_load_dwordx4 {vr(r)}, v4, s[8:11], s44 offen offset:{(i % 4) * 1024} sc1')
def greduce(v, t, op):
    a(f'v_mov_b32 v{t}, v{v}\nv_permlane32_swap_b32 v{v}, v{t}\n{op} v{v}, v{v}, v{t}')
    a(f'v_mov_b32 v{t}, v{v}\nv_permlane16_swap_b32 v{v}, v{t}\n{op} v{v}, v{v}, v{t}')
def greduce_n(vs, t, op):
    for sw in ('32', '16'):
        for k, v in enumerate(vs): a(f'v_mov_b32 v{t+k}, v{v}')
        for k, v in enumerate(vs): a(f'v_permlane{sw}_swap_b32 v{v}, v{t+k}')
        for k, v in enumerate(vs): a(f'{op} v{v}, v{v}, v{t+k}')
def xred_write(v, n, t, op, off):
    greduce_n(list(range(v, v+n)), t, op)
    a(f'ds_write_b{32*n} v{6 if n == 4 else 8}, {vr(v, n)} offset:{off}')
def xred_read(v, n, t, op, off):
    for k in range(3): a(f'ds_read_b{32*n} {vr(t + n*k, n)}, v{7 if n == 4 else 9} offset:{off + 4*n*k}')
    a('s_waitcnt lgkmcnt(0)')
    for k in range(n):
        if op == 'v_max_f32': a(f'v_max3_f32 v{v+k}, v{t+k}, v{t+n+k}, v{t+2*n+k}')
        else: a(f'v_add_f32 v{v+k}, v{t+k}, v{t+n+k}\nv_add_f32 v{v+k}, v{v+k}, v{t+2*n+k}')
    greduce_n(list(range(v, v+n)), t, op)
C = {}
def mk_ar(b):
    C['ar'] = b; a('v_and_b32 v11, 3, v2')
    for r in range(4): a(f'v_cmp_eq_u32 vcc, {r}, v11\nv_cndmask_b32_e64 v{b+r}, 0, 1.0, vcc')
def mk_sel(b):
    C['sel'] = b; a('v_lshlrev_b32 v11, 2, v3\nv_sub_u32 v11, v2, v11')
    for r in range(4): a(f'v_cmp_eq_u32 vcc, {r}, v11\nv_cndmask_b32_e64 v{b+4+r}, 0, 1.0, vcc\nv_lshrrev_b32 v{b+r}, 16, v{b+4+r}')
def gsum(d, v, n):
    for r in range(n): a(f'v_mfma_f32_16x16x4_f32 {vr(d)}, v{C["ar"]+r}, v{v+r}, {vr(d) if r else 0}')
def madd(X, r, first=False):
    for q in range(2): a(f'{MF} {vr(X[q])}, {vr(C["sel"]+4*q)}, {vr(r)}, {0 if first else vr(X[q])}')
def poll(va, bound=0x8000, fail=None):
    l, d = L(), L()
    a(f's_mov_b32 s45, {bound}'); a.label(l)
    a(f'buffer_load_dword v11, v{va}, s[8:11], 0 offen sc1\ns_waitcnt vmcnt(0)\nv_cmp_ne_u32 vcc, s43, v11\ns_nop 1\ns_cbranch_vccz {d}')
    a(f's_sub_u32 s45, s45, 1\ns_cbranch_scc1 {fail or d}\ns_sleep 1\ns_branch {l}'); a.label(d)
def spoll(lds, n, fb=None):
    l, d = L(), L()
    a(f's_mov_b32 s45, {SB}'); a.label(l)
    for dst, w, so, im in lds: a(f's_load_dwordx{w} s[{dst}:{dst+w-1}], s[8:9], s{so} offset:{im}' + ('' if fb else ' glc'))
    a('s_waitcnt lgkmcnt(0)')
    if n & 1: a(f's_mov_b32 s{48+n}, s43')
    for k in range(48, 48 + n, 2): a(f's_xor_b64 s[{k}:{k+1}], s[{k}:{k+1}], s[100:101]')
    for k in range(50, 48 + n, 2): a(f's_or_b64 s[48:49], s[48:49], s[{k}:{k+1}]')
    if fb:
        a(f's_cbranch_scc0 {d}'); flag_addr(10, fb); poll(10)
    else: a(f's_cbranch_scc0 {d}\ns_sub_u32 s45, s45, 1\ns_cbranch_scc1 {d}\ns_sleep {SL}\ns_branch {l}')
    a.label(d)
def flag_addr(va, groups):
    g0 = groups[0]
    a(f'v_min_u32 v{va}, {g0[1]-1}, v2\nv_lshl_add_u32 v{va}, v{va}, 2, s{g0[0]}')
    for k, (sb, n) in enumerate(groups[1:], 1):
        a(f'v_min_u32 v11, {n-1}, v2\nv_lshl_add_u32 v11, v11, 2, s{sb}\nv_cmp_eq_u32 vcc, {k}, v3\nv_cndmask_b32 v{va}, v{va}, v11, vcc')
def publish(sf):
    a(f'v_mov_b32 v11, s43\nv_mov_b32 v10, 0\ns_waitcnt vmcnt(0)\ns_mov_b64 exec, 1\nbuffer_store_dword v11, v10, s[8:11], s{sf} offen sc1\ns_mov_b64 exec, -1')
def unpack(dl, dh, r):
    for k in range(4): a(f'v_lshlrev_b32 v{dl+k}, 16, v{r+k}\nv_and_b32 v{dh+k}, s42, v{r+k}')
def addsrc(X, r, T):
    unpack(T, T+4, r)
    for q in range(2):
        for k in (0, 2): a(f'v_pk_add_f32 {vr(X[q]+k,2)}, {vr(X[q]+k,2)}, {vr(T+4*q+k,2)}')
def packx(d, X):
    for k in range(4): a(f'v_cvt_pk_bf16_f32 v{d+k}, v{X[0]+k}, v{X[1]+k}')
HL, ST, OL, QL, PL, EX = 0, 24576, 28672, 34816, 40960, 65536
MX, SM, GL, QK = ST, ST + 1536, PL, HL
XR = 12
def ln_tail(X, T, mid=None):
    s = T + 12
    for t in range(2):
        p = [vr(X[t][q]+k, 2) for q in range(2) for k in (0, 2)]
        a(f'v_pk_add_f32 {vr(T,2)}, {p[0]}, {p[1]}\nv_pk_mul_f32 {vr(T+2,2)}, {p[0]}, {p[0]}\nv_pk_add_f32 {vr(T,2)}, {vr(T,2)}, {p[2]}')
        a(f'v_pk_fma_f32 {vr(T+2,2)}, {p[1]}, {p[1]}, {vr(T+2,2)}\nv_pk_add_f32 {vr(T,2)}, {vr(T,2)}, {p[3]}')
        a(f'v_pk_fma_f32 {vr(T+2,2)}, {p[2]}, {p[2]}, {vr(T+2,2)}\nv_pk_fma_f32 {vr(T+2,2)}, {p[3]}, {p[3]}, {vr(T+2,2)}')
        a(f'v_add_f32 v{s+2*t}, v{T}, v{T+1}\nv_add_f32 v{s+2*t+1}, v{T+2}, v{T+3}')
    gsum(T+4, s, 4)
    a(f'ds_write_b128 v6, {vr(T+4)} offset:{ST}\ns_waitcnt lgkmcnt(0)\ns_barrier')
    for k in range(3): a(f'ds_read_b128 {vr(T + 4*k)}, v7 offset:{ST + 16*k}')
    if mid: mid()
    a('s_waitcnt lgkmcnt(0)')
    for k in (1, 2):
        for j in (0, 2): a(f'v_pk_add_f32 {vr(T+j,2)}, {vr(T+j,2)}, {vr(T+4*k+j,2)}')
    gsum(s, T, 4)
    for t in range(2):
        m, q = s + 2*t, s + 2*t + 1
        a(f'v_mul_f32 v{m}, {hex(f2u(1/384))}, v{m}\nv_mul_f32 v{q}, {hex(f2u(1/384))}, v{q}\nv_fma_f32 v{q}, -v{m}, v{m}, v{q}')
        a(f'v_max_f32 v{q}, 0, v{q}\nv_add_f32 v{q}, {hex(f2u(1e-5))}, v{q}\nv_rsq_f32 v{q}, v{q}\nv_mul_f32 v{m}, -v{m}, v{q}')
    for t in range(2):
        for q in range(2):
            for k in (0, 2):
                p = vr(X[t][q]+k, 2)
                a(f'v_pk_fma_f32 {p}, {p}, {vr(s+2*t,2)}, {vr(s+2*t,2)} op_sel:[0,1,0] op_sel_hi:[1,1,0]')
        packx(T + 4*t, X[t])
        a(f'ds_write_b128 v5, {vr(T+4*t)} offset:{HL + t*12288}')
    a('s_waitcnt lgkmcnt(0)\ns_barrier')
def gemm(nk, nf, Wr, B, acc, swap, boff, tstride, vm=None, post=None, order=None):
    order = order or list(range(nk))
    def rd(k):
        for t in range(2): a(f'ds_read_b128 {vr(B + 4*((k%2)*2 + t))}, v4 offset:{boff + t*tstride + order[k]*1024}')
    rd(0)
    for k in range(nk):
        if k + 1 < nk: rd(k + 1)
        a(f's_waitcnt lgkmcnt({2 if k+1 < nk else 0})' + (f' vmcnt({vm(k)})' if vm else ''))
        for f in range(nf):
            for t in range(2):
                w = vr(Wr[order[k]*nf + f]); b = vr(B + 4*((k%2)*2 + t)); c = vr(acc + 4*(f*2 + t))
                x, y = (b, w) if swap else (w, b)
                a(f'{MF} {c}, {x}, {y}, {c if k else 0}')
        if post: post(k)
def perms(raw, stride, w, dst):
    for f in range(2*w):
        m, p = f >> 1, f & 1
        for d in range(4): a(f'v_perm_b32 v{dst + 4*f + d}, v{raw + (2*d+1)*stride + m}, v{raw + 2*d*stride + m}, s{40+p}')
def scol(dst, k):
    a(f's_mul_i32 s{dst}, s{k}, 11\ns_lshr_b32 s{dst}, s{dst}, 5\ns_mul_i32 s{dst}, s{dst}, 144\ns_lshl_b32 s45, s{k}, 4\ns_add_u32 s{dst}, s{dst}, s45')
NAME = 'standalone__video_videomae__vision_kernel'
a.raw(f'.globl {NAME}\n.p2align 8\n.type {NAME},@function\n{NAME}:')
if DIAG: a('s_memtime s[98:99]')
if GD: a('s_memrealtime s[96:97]')
a(f's_cmp_ge_u32 s2, {NRP+192}\ns_cbranch_scc1 the_end')
a('s_load_dwordx16 s[48:63], s[0:1], 0\ns_load_dwordx2 s[8:9], s[0:1], 72')
a('v_lshrrev_b32 v5, 6, v0\nv_and_b32 v1, 63, v0\nv_readfirstlane_b32 s3, v5\nv_and_b32 v2, 15, v0\nv_bfe_u32 v3, v0, 4, 2\nv_lshlrev_b32 v4, 4, v1')
a(f's_mov_b32 s10, {WSN}\ns_mov_b32 s11, 0x20000\ns_mov_b32 s40, 0x05040100\ns_mov_b32 s41, 0x07060302\ns_mov_b32 s42, 0xffff0000')
a(f's_cmp_lt_u32 s2, {NRP}\ns_cbranch_scc1 repack')
a(f's_sub_u32 s46, s2, {NRP}\ns_and_b32 s47, s46, 7\ns_lshr_b32 s46, s46, 3\ns_and_b32 s4, s46, 3\ns_lshr_b32 s5, s47, 1\ns_and_b32 s44, s47, 1')
a('s_mul_i32 s6, s44, 6\ns_lshr_b32 s45, s46, 2\ns_add_u32 s6, s6, s45\ns_lshl_b32 s7, s5, 2\ns_add_u32 s7, s7, s4')
a('s_mov_b32 s28, s5\ns_lshl_b32 s29, s46, 1\ns_add_u32 s29, s29, s44\ns_mul_i32 s30, s5, 12\ns_add_u32 s30, s30, s6\ns_lshl_b32 s31, s30, 1')
scol(32, 3)
a('v_and_b32 v10, 3, v2\nv_mul_u32_u24 v10, 384, v10\nv_lshrrev_b32 v11, 2, v2\ns_lshl_b32 s44, s29, 3\nv_add3_u32 v10, v10, v11, s44\nv_mul_u32_u24 v10, 768, v10')
a('v_mul_u32_u24 v11, 48, v3\nv_add_u32 v10, v10, v11\nv_mul_u32_u24 v9, 768, v2\nv_add_u32 v9, v9, v11')
a('s_mul_i32 s33, s31, 12288\ns_add_u32 s33, s33, s32\ns_add_u32 s34, s33, 12288')
a('s_waitcnt lgkmcnt(0)')
a(f's_add_u32 s46, s8, {EPO}\ns_addc_u32 s47, s9, 0\ns_load_dword s43, s[46:47], 0')
srd(12, 48, S); srd(16, 50, 884736); srd(20, 52, 294912); srd(24, 62, S)
stamp(0)
a(f'buffer_load_dwordx4 {vr(20)}, v10, s[12:15], s32 offen\nbuffer_load_dwordx4 {vr(24)}, v10, s[12:15], s32 offen offset:3072')
def common_addrs():
    a('v_mov_b32 v0, v9\ns_lshl_b32 s44, s3, 10\nv_add_u32 v5, s44, v4')
    a('v_mul_u32_u24 v7, 192, v2\ns_lshl_b32 s44, s3, 4\nv_add_u32 v6, s44, v7\nv_lshrrev_b32 v8, 1, v6\nv_mad_u32_u24 v7, v3, 48, v7\nv_lshrrev_b32 v9, 1, v7')
def ln1(after, mid):
    X = [(28, 32), (36, 40)]
    mk_ar(60)
    for t in range(2):
        if t == 0: stamp(23)
        a(f's_waitcnt vmcnt({after + (1 - t if after > 0 else 0)})'); unpack(X[t][0], X[t][1], 20 + 4*t)
    stamp(24)
    ln_tail(X, 44, mid)
    a('s_add_u32 s43, s43, 1\ns_mov_b32 s100, s43\ns_mov_b32 s101, s43')
a('s_lshr_b32 s47, s29, 3\ns_sub_u32 s44, s3, 6\ns_cmp_eq_u32 s44, 3\ns_cbranch_scc1 k1_tx\ns_cmp_ge_u32 s44, 3\ns_cbranch_scc1 k1_nt')
a('s_lshr_b32 s45, s29, 1\ns_mul_i32 s45, s45, 3\ns_add_u32 s44, s44, s45\ns_lshl_b32 s44, s44, 6\nv_add_u32 v11, s44, v1\ns_cmp_ge_u32 s44, 3456\ns_cbranch_scc1 k1_tp')
a('v_mul_u32_u24 v10, 21846, v11\nv_lshrrev_b32 v10, 16, v10\nv_mul_u32_u24 v10, 576, v10\nv_lshl_add_u32 v10, v11, 6, v10\ns_mul_i32 s44, s28, 192\nbuffer_load_dword v28, v10, s[16:19], s44 offen\ns_branch k1_nt')
a.label('k1_tx')
a('v_min_u32 v10, 47, v1\nv_lshlrev_b32 v10, 7, v10\ns_lshl_b32 s44, s31, 1\ns_add_u32 s44, s44, s4\ns_mul_i32 s44, s44, 6144\nbuffer_load_dword v28, v10, s[12:15], s44 offen\ns_branch k1_nt')
a.label('k1_tp')
a('v_lshlrev_b32 v10, 6, v11\nv_subrev_u32 v10, 221184, v10\ns_mul_i32 s44, s28, 73728\nbuffer_load_dword v28, v10, s[20:23], s44 offen')
a.label('k1_nt')
a('s_mov_b32 s69, s47\ns_barrier\ns_cmp_ge_u32 s3, 6\ns_cbranch_scc1 k1_proj')
sdivmod(35, 36, 3, 3)
RING, FR, B, ACC = 104, 72, 96, 20
a('v_mul_u32_u24 v68, 55296, v3\nv_mul_u32_u24 v69, 12, v2\ns_mul_i32 s44, s36, 768\ns_mul_i32 s45, s28, 192\ns_add_u32 s44, s44, s45\ns_mul_i32 s45, s35, 442368\ns_add_u32 s44, s44, s45\nv_add3_u32 v68, v68, v69, s44')
for q in range(1, 4): a(f'v_add_u32 v{68+q}, {q*4608}, v68')
def wl(k):
    a(f's_mov_b32 s44, {(96*(k//3) + 8*(k%3))*2304}')
    for j in range(8): a(f'buffer_load_dwordx3 {vr(RING + (k%2)*32 + 4*j, 3)}, v{68 + j//2}, s[16:19], s44 offen offset:{(j&1)*2304}')
for k in range(NPRE): wl(k)
def mid1():
    a('s_waitcnt vmcnt(8)'); perms(RING, 4, 3, FR); wl(2)
common_addrs(); ln1(8*NPRE, mid1); stamp(1)
for k in range(NPRE, 2): wl(k)
a('s_mul_i32 s44, s35, 18432\nv_add_u32 v10, s44, v4\ns_mul_i32 s44, s35, 6144\ns_sub_u32 s44, 12288, s44\nv_add_u32 v11, s44, v4')
W2K = [72 + 4*i for i in range(24)]
def rpoll(): spoll([(48, 8, 38, 0), (56, 4, 38, 32)], 12, [(38, 12)])
def rpoll2():
    a(f's_lshl_b32 s46, s3, 7\ns_add_u32 s47, s46, {FR2}\ns_mul_i32 s44, s4, 24\ns_add_u32 s47, s47, s44\ns_add_u32 s46, s46, {FRP}')
    a(f's_mul_i32 s39, s4, 12\ns_add_u32 s39, s39, s3\ns_lshr_b32 s64, s39, 2\ns_lshl_b32 s64, s64, 7\ns_add_u32 s64, s64, {FR1}')
    spoll([(48, 4, 46, 0), (52, 2, 46, 16), (54, 2, 47, 16), (56, 4, 47, 0)], 12, [(46, 6), (47, 6)])
    spoll([(48, 8, 64, 0), (56, 4, 64, 32)], 12, [(64, 12)])
def k2pre(n=24):
    stamp(3)
    a(f's_lshl_b32 s38, s35, 2\ns_add_u32 s38, s38, s4\ns_lshl_b32 s38, s38, 7\ns_add_u32 s38, s38, {FRQ}')
    rpoll()
    a(f's_mul_i32 s46, s4, 6\ns_add_u32 s46, s46, s3\ns_mul_i32 s46, s46, 24576\ns_add_u32 s46, s46, {WQ}')
    if n == 24: a('s_barrier')
    lin_loads(W2K[:n], 46)
for role in ('qk', 'v'):
    if role == 'qk': a('s_cmp_eq_u32 s36, 2\ns_cbranch_scc1 k1_v')
    else: a.label('k1_v')
    for k in range(6):
        for t in range(2): a(f'ds_read_b128 {vr(B + 4*t)}, v{10+t} offset:{HL + k*1024}')
        if k:
            a(f's_waitcnt vmcnt({8 if k < 5 else 0})')
            perms(RING + (k%2)*32, 4, 3, FR)
            if k + 2 < 6: wl(k + 2)
        a('s_waitcnt lgkmcnt(0)')
        for f in range(6):
            for t in range(2):
                w = vr(FR + 4*f); b = vr(B + 4*t); c = vr(ACC + 4*(f*2 + t))
                x, y = (b, w) if role == 'v' else (w, b)
                a(f'{MF} {c}, {x}, {y}, {c if k else 0}')
    stamp(2)
    a(f's_lshl_b32 s44, s36, 1\ns_add_u32 s44, s44, s35\ns_mul_i32 s46, s44, 3072\ns_mul_i32 s45, s44, 6144\ns_add_u32 s45, s45, {EX}\nv_add_u32 v10, s45, v4\ns_xor_b32 s44, s44, 1\ns_mul_i32 s45, s44, 6144\ns_add_u32 s45, s45, {EX}\nv_add_u32 v11, s45, v4')
    for f in range(6): a(f'ds_write_b128 v11, {vr(ACC + 8*f + 4)} offset:{f*1024}')
    a('s_waitcnt lgkmcnt(0)\ns_barrier')
    for f in range(6): a(f'ds_read_b128 {vr(ACC + 8*f + 4)}, v10 offset:{f*1024}')
    a('v_add_u32 v10, s46, v4')
    for f in range(6):
        a(f's_waitcnt lgkmcnt({5-f})')
        for k in (0, 2): a(f'v_pk_add_f32 {vr(ACC+8*f+k,2)}, {vr(ACC+8*f+k,2)}, {vr(ACC+8*f+4+k,2)}')
    if role == 'qk':
        for r in range(4):
            for f in (0, 2, 4): a(f'v_cvt_pk_bf16_f32 v{FR + 3*r + f//2}, v{ACC + 8*f + r}, v{ACC + 8*(f+1) + r}')
        for i in range(3): a(f'ds_write_b128 v10, {vr(FR + 4*i)} offset:{QK + i*1024}')
        a('s_waitcnt lgkmcnt(0)\ns_barrier')
        k2pre(12)
        a('s_barrier\ns_barrier'); lin_loads(W2K[12:], 46, 12); a('s_branch k2')
    else:
        for f in range(6):
            c = ACC + 8*f
            a(f'v_cvt_pk_bf16_f32 v{FR+4*f}, v{c}, v{c+1}\nv_cvt_pk_bf16_f32 v{FR+4*f+1}, v{c+2}, v{c+3}\nv_mov_b32 v{FR+4*f+2}, 0\nv_mov_b32 v{FR+4*f+3}, 0')
        a(f'v_lshrrev_b32 v11, 2, v2\nv_cmp_eq_u32 vcc, v11, v3\ns_mov_b32 s44, {hex(f2u(SC))}\nv_mov_b32 v102, 0\nv_mov_b32 v103, 0\ns_mul_i32 s46, s35, 3072\nv_add_u32 v10, s46, v4\ns_barrier')
        for i in range(3): a(f'ds_read_b128 {vr(RING + 8*i)}, v10 offset:{QK + i*1024}\nds_read_b128 {vr(RING + 8*i + 4)}, v10 offset:{QK + 6144 + i*1024}')
        c, m = 96, 68
        for i in range(3): a(f's_waitcnt lgkmcnt({4-2*i})\n{MF} {vr(c)}, {vr(RING + 8*i + 4)}, {vr(RING + 8*i)}, {vr(c) if i else 0}')
        a(f'v_max3_f32 v{m}, v{c}, v{c+1}, v{c+2}\nv_max_f32 v{m}, v{m}, v{c+3}\nv_mul_f32 v{m}, s44, v{m}')
        for r in range(4): a(f'v_fma_f32 v{c+r}, v{c+r}, s44, -v{m}')
        for r in range(4): a(f'v_exp_f32 v{c+r}, v{c+r}')
        a(f'v_add_f32 v{m}, v{c}, v{c+1}\nv_add_f32 v{m+1}, v{c+2}, v{c+3}\nv_add_f32 v{m}, v{m}, v{m+1}\nv_rcp_f32 v{m}, v{m}')
        for r in range(4): a(f'v_mul_f32 v{c+r}, v{c+r}, v{m}')
        a(f'v_cvt_pk_bf16_f32 v100, v{c}, v{c+1}\nv_cvt_pk_bf16_f32 v101, v{c+2}, v{c+3}\nv_cndmask_b32 v100, 0, v100, vcc\nv_cndmask_b32 v101, 0, v101, vcc')
        for f in range(6): a(f'{MF} {vr(ACC + 4*f)}, {vr(FR + 4*f)}, {vr(100)}, 0')
        for r in range(4):
            for f in (0, 2, 4): a(f'v_cvt_pk_bf16_f32 v{RING + 3*r + f//2}, v{ACC + 4*f + r}, v{ACC + 4*(f+1) + r}')
        for i in range(3): a(f'ds_write_b128 v10, {vr(RING + 4*i)} offset:{OL + i*1024}')
        a('s_waitcnt lgkmcnt(0)\ns_barrier')
k2pre()
a('s_branch k2')
a.label('k1_proj'); a.hist = []
a('s_sub_u32 s35, s3, 6\ns_lshl_b32 s44, s35, 1\nv_bfe_u32 v68, v2, 1, 1\nv_add_u32 v68, s44, v68\nv_mul_u32_u24 v69, 11, v68\nv_lshrrev_b32 v69, 5, v69\nv_mul_u32_u24 v69, 144, v69')
a('v_lshl_add_u32 v68, v68, 4, v69\nv_lshrrev_b32 v69, 2, v2\nv_mul_u32_u24 v69, 48, v69\nv_and_b32 v70, 1, v2\nv_lshlrev_b32 v70, 3, v70\nv_add3_u32 v68, v68, v69, v70')
a('v_mul_u32_u24 v69, 18432, v3\nv_add_u32 v68, v68, v69\nv_add_u32 v69, 3072, v68\ns_mul_i32 s46, s28, 73728')
RAW, FR = 120, 72
def pl(i):
    a(f's_add_u32 s44, s46, {i*6144}')
    for j in range(8): a(f'buffer_load_dwordx2 {vr(RAW + 16*i + 2*j, 2)}, v{68 + j//4}, s[20:23], s44 offen offset:{(j&3)*768}')
common_addrs(); ln1(0, lambda: pl(0)); stamp(1)
pl(1); a('s_barrier\ns_setprio 2'); pl(2); a('s_barrier')
a('v_and_b32 v70, 3, v2\nv_lshlrev_b32 v70, 8, v70\nv_lshrrev_b32 v71, 2, v2\nv_lshl_add_u32 v71, v3, 2, v71\nv_lshl_add_u32 v70, v71, 4, v70')
a(f's_mul_i32 s36, s29, 24576\ns_mul_i32 s44, s28, {S}\ns_add_u32 s36, s36, s44\ns_lshl_b32 s44, s35, 12\ns_add_u32 s36, s36, s44')
a(f's_lshr_b32 s37, s29, 2\ns_mul_i32 s37, s37, 6\ns_add_u32 s37, s37, s35\ns_lshl_b32 s37, s37, 7\ns_and_b32 s44, s29, 3\ns_lshl_b32 s44, s44, 4\ns_add_u32 s37, s37, s44\ns_lshl_b32 s44, s28, 2\ns_add_u32 s37, s37, s44\ns_add_u32 s37, s37, {F1}')
for i in range(2):
    a(f's_waitcnt vmcnt({8*(2-i)})'); perms(RAW + 16*i, 2, 2, FR + 16*i)
a(f's_lshl_b32 s38, s4, 7\ns_add_u32 s38, s38, {FRQ + 8*128}')
rpoll(); a('s_waitcnt vmcnt(0)'); perms(RAW + 32, 2, 2, FR + 32)
stamp(2)
W2V = [120 + 4*i for i in range(12)]
a('s_barrier'); stamp(3)
gemm(3, 4, [FR + 4*i for i in range(12)], 52, 20, False, OL, 3072)
for t in range(2):
    for rho in range(2):
        d = 52 + 4*(t*2+rho); A_ = lambda f, r: f'v{20 + 4*(f*2 + t) + r}'
        a(f'v_cvt_pk_bf16_f32 v{d}, {A_(0,2*rho)}, {A_(1,2*rho)}\nv_cvt_pk_bf16_f32 v{d+1}, {A_(2,2*rho)}, {A_(3,2*rho)}')
        a(f'v_cvt_pk_bf16_f32 v{d+2}, {A_(0,2*rho+1)}, {A_(1,2*rho+1)}\nv_cvt_pk_bf16_f32 v{d+3}, {A_(2,2*rho+1)}, {A_(3,2*rho+1)}')
        a(f'buffer_store_dwordx4 {vr(d)}, v70, s[8:11], s36 offen offset:{rho*2048 + t*1024} sc1')
a('s_barrier')
publish(37); stamp(25)
a('s_setprio 0')
a(f's_mul_i32 s46, s4, 6\ns_add_u32 s46, s46, s35\ns_mul_i32 s46, s46, 12288\ns_add_u32 s46, s46, {WQ + 24*24576}')
lin_loads(W2V, 46)
a.label('k2'); a.fence(); stamp(4)
a(f'buffer_load_dwordx4 {vr(XR)}, v0, s[12:15], s33 offen\nbuffer_load_dwordx4 {vr(XR+4)}, v0, s[12:15], s34 offen')
rpoll2()
a(f's_mul_i32 s65, s39, 24576\ns_add_u32 s65, s65, {W2P}\ns_lshl_b32 s64, s3, 13\ns_add_u32 s64, s64, {EX}')
def dma(q):
    a(f's_add_u32 m0, s64, {4096*q}\ns_add_u32 s44, s65, {16384 + 4096*q}')
    for i in range(4): a(f'buffer_load_dwordx4 v4, s[8:11], s44 offen offset:{1024*i} sc1 lds')
a(f's_mul_i32 s46, s6, 6\ns_lshr_b32 s44, s3, 1\ns_add_u32 s46, s46, s44\ns_lshl_b32 s46, s46, 7\ns_add_u32 s46, s46, {F1}')
a('s_mul_i32 s38, s31, 12288\ns_lshl_b32 s44, s3, 10\ns_add_u32 s38, s38, s44')
mk_sel(60); mk_ar(68)
a('v_lshrrev_b32 v52, 3, v2\nv_mul_u32_u24 v52, 24576, v52\nv_bfe_u32 v53, v2, 2, 1\nv_lshl_add_u32 v52, v53, 10, v52\nv_lshl_add_u32 v52, v3, 6, v52\nv_and_b32 v53, 3, v2\nv_lshl_add_u32 v52, v53, 4, v52')
a('s_mul_i32 s47, s6, 98304\ns_lshl_b32 s44, s3, 11\ns_add_u32 s47, s47, s44\ns_lshl_b32 s44, s5, 8\ns_add_u32 s47, s47, s44')
spoll([(48, 16, 46, 0)], 16); stamp(5)
for t in range(2):
    for s in range(4): a(f's_add_u32 s44, s47, {P1 + s*S + t*49152}\nbuffer_load_dwordx4 {vr(20 + 16*t + 4*s)}, v52, s[8:11], s44 offen sc1')
X = [(52, 56), (20, 24)]
for t in range(2):
    if t == 0: a('s_waitcnt vmcnt(8)')
    madd(X[t], XR + 4*t, True)
    for s in range(4):
        a(f's_waitcnt vmcnt({7 - 4*t - s})'); madd(X[t], 20 + 16*t + 4*s)
for t in range(2): packx(XR + 4*t, X[t]); madd(X[t], XR + 4*t, True)
stamp(6)
ln_tail(X, 28, lambda: dma(0)); stamp(7)
dma(1)
a('s_cmp_ge_u32 s3, 6\ns_cbranch_scc1 k2_v')
gemm(12, 2, W2K, 20, 36, False, HL, 12288); stamp(8)
for t in range(2):
    for p in range(2):
        c = 36 + 4*(p*2+t); a(f'v_cvt_pk_bf16_f32 v{52+4*t+2*p}, v{c}, v{c+1}\nv_cvt_pk_bf16_f32 v{53+4*t+2*p}, v{c+2}, v{c+3}')
a('s_cmp_ge_u32 s3, 3\ns_cbranch_scc1 k2_k')
for t in range(2): a(f'ds_write_b128 v5, {vr(52+4*t)} offset:{QL + t*3072}')
a('s_branch k3'); a.label('k2_k')
a(f's_mul_i32 s46, s7, 12\ns_add_u32 s46, s46, s6\ns_mul_i32 s44, s46, 6144\ns_lshl_b32 s45, s36, 10\ns_add_u32 s44, s44, s45\ns_add_u32 s44, s44, {KF}')
for t in range(2): a(f'buffer_store_dwordx4 {vr(52+4*t)}, v4, s[8:11], s44 offen offset:{t*3072} sc1')
a(f's_lshl_b32 s46, s46, 7\ns_lshl_b32 s45, s36, 2\ns_add_u32 s46, s46, s45\ns_add_u32 s46, s46, {F2K}')
publish(46)
a('s_branch k3'); a.label('k2_v'); a.hist = []
gemm(12, 1, W2V, 20, 36, True, HL, 12288); stamp(8)
for t in range(2):
    c = 36 + 4*t; a(f'v_cvt_pk_bf16_f32 v{52+2*t}, v{c}, v{c+1}\nv_cvt_pk_bf16_f32 v{53+2*t}, v{c+2}, v{c+3}')
a(f's_mul_i32 s46, s7, 6\ns_add_u32 s46, s46, s35\ns_mul_i32 s44, s46, 12\ns_add_u32 s44, s44, s6\ns_lshl_b32 s44, s44, 10\ns_add_u32 s44, s44, {VF}')
a(f'buffer_store_dwordx4 {vr(52)}, v4, s[8:11], s44 offen sc1')
a(f's_lshl_b32 s46, s46, 7\ns_lshl_b32 s45, s6, 2\ns_add_u32 s46, s46, s45\ns_add_u32 s46, s46, {F2V}')
publish(46)
a.label('k3'); a.fence(); stamp(9)
a(f's_mul_i32 s46, s39, 6144\ns_add_u32 s46, s46, {WP}')
WPR = [144 + 4*i for i in range(6)]
lin_loads(WPR, 46)
a(f's_sub_u32 s39, s65, {W2P - W1P}')
W1R = [96 + 4*i for i in range(12)] + [20 + 4*i for i in range(12)]
a('s_lshl_b32 s35, s69, 1\ns_add_u32 s35, s35, s3\ns_sub_u32 s44, s35, 12\ns_cmp_ge_u32 s35, 12\ns_cselect_b32 s35, s44, s35')
a('s_min_u32 s44, s3, 5\ns_add_u32 s69, s69, s44\ns_sub_u32 s44, s69, 6\ns_cmp_ge_u32 s69, 6\ns_cselect_b32 s69, s44, s69')
a(f's_mul_i32 s46, s7, 12\ns_add_u32 s46, s46, s35\ns_mul_i32 s36, s46, 6144\ns_add_u32 s36, s36, {KF}\ns_lshl_b32 s46, s46, 7\ns_add_u32 s46, s46, {F2K}')
a(f's_mul_i32 s47, s7, 6\ns_add_u32 s47, s47, s69\ns_mul_i32 s37, s47, 12288\ns_add_u32 s37, s37, {VF}\ns_lshl_b32 s47, s47, 7\ns_add_u32 s47, s47, {F2V}')
a('s_waitcnt lgkmcnt(0)\ns_barrier')
K, Q, SA, T, V = 20, 44, 68, 84, 96
for i in range(6): a(f'ds_read_b128 {vr(Q + 4*i)}, v4 offset:{QL + i*1024}')
spoll([(48, 4, 46, 0)], 3); stamp(10)
lin_loads([K + 4*i for i in range(6)], 36)
a(f's_mov_b32 s64, {hex(f2u(SC))}\ns_waitcnt lgkmcnt(0)')
for tau in range(2):
    a(f's_waitcnt vmcnt({3*(1-tau)})')
    for i in range(3):
        for u in range(2):
            c = vr(SA + 4*(u*2+tau)); a(f'{MF} {c}, {vr(K + 4*(tau*3+i))}, {vr(Q + 4*(u*3+i))}, {c if i else 0}')
stamp(11)
a('s_cmp_ge_u32 s3, 6\ns_cbranch_scc1 k3_b')
spoll([(48, 8, 47, 0), (56, 4, 47, 32)], 12, [(47, 12)])
lin_loads([V + 4*i for i in range(12)], 37); a.label('k3_b'); a('s_nop 7')
M = 92
for u in range(2):
    e = SA + 8*u
    a(f'v_max3_f32 v{M+u}, v{e}, v{e+1}, v{e+2}\nv_max3_f32 v{M+u}, v{M+u}, v{e+3}, v{e+4}\nv_max3_f32 v{M+u}, v{M+u}, v{e+5}, v{e+6}\nv_max_f32 v{M+u}, v{M+u}, v{e+7}')
xred_write(M, 2, T, 'v_max_f32', MX)
a('s_lshl_b32 s44, s35, 11\nv_add_u32 v10, s44, v4\ns_waitcnt lgkmcnt(0)\ns_barrier')
xred_read(M, 2, T, 'v_max_f32', MX)
for u in range(2): a(f'v_mul_f32 v{M+u}, s64, v{M+u}')
for u in range(2):
    e = SA + 8*u
    for k in range(8): a(f'v_fma_f32 v{e+k}, v{e+k}, s64, -v{M+u}')
    for k in range(8): a(f'v_exp_f32 v{e+k}, v{e+k}')
    for k in range(4): a(f'v_cvt_pk_bf16_f32 v{T+4*u+k}, v{e+2*k}, v{e+2*k+1}')
    a(f'ds_write_b128 v10, {vr(T+4*u)} offset:{PL + u*1024}')
    a(f'v_pk_add_f32 {vr(e,2)}, {vr(e,2)}, {vr(e+2,2)}\nv_pk_add_f32 {vr(e+4,2)}, {vr(e+4,2)}, {vr(e+6,2)}\nv_pk_add_f32 {vr(e,2)}, {vr(e,2)}, {vr(e+4,2)}\nv_add_f32 v{M+2+u}, v{e}, v{e+1}')
xred_write(M+2, 2, SA, 'v_add_f32', SM)
a('s_cmp_lt_u32 s3, 6\ns_cbranch_scc1 k3_c')
lin_loads(W1R[:8], 39); a.label('k3_c')
a('s_waitcnt lgkmcnt(0)\ns_barrier'); stamp(12)
W1R = [96 + 4*i for i in range(12)] + [20 + 4*i for i in range(12)]
a('s_cmp_lt_u32 s3, 6\ns_cbranch_scc1 k3_pv')
lin_loads(W1R[8:], 39, 8)
a('s_branch k3_o'); a.label('k3_pv')
PB = [20 + 4*(i % 12) for i in range(24)]
OA = 68
for i in range(12): a(f'ds_read_b128 {vr(PB[i])}, v4 offset:{PL + i*1024}')
for kb in range(12):
    nrd = min(24, 12 + 2*max(0, kb - 1))
    a(f's_waitcnt vmcnt({11 - kb}) lgkmcnt({nrd - 2*kb - 2})')
    for u in range(2):
        c = vr(OA + 4*u); a(f'{MF} {c}, {vr(V + 4*kb)}, {vr(PB[2*kb+u])}, {c if kb else 0}')
    if kb >= 1:
        for i in range(nrd, min(24, nrd + 2)): a(f'ds_read_b128 {vr(PB[i])}, v4 offset:{PL + i*1024}')
a('s_lshr_b32 s44, s69, 1\ns_lshl_b32 s44, s44, 10\ns_and_b32 s45, s69, 1\ns_lshl_b32 s45, s45, 3\ns_add_u32 s44, s44, s45\nv_add_u32 v10, s44, v4')
xred_read(M, 2, T, 'v_add_f32', SM)
for u in range(2): a(f'v_rcp_f32 v{M+u}, v{M+u}')
for u in range(2):
    c = OA + 4*u
    for r in range(4): a(f'v_mul_f32 v{c+r}, v{c+r}, v{M+u}')
    a(f'v_cvt_pk_bf16_f32 v{c}, v{c}, v{c+1}\nv_cvt_pk_bf16_f32 v{c+1}, v{c+2}, v{c+3}\nds_write_b64 v10, {vr(c,2)} offset:{OL + u*3072}')
a('s_waitcnt lgkmcnt(0)'); a.label('k3_o')
a('s_barrier'); stamp(13)
a('s_setprio 2')
def rdo(n): a(f'ds_read_b128 {vr(84 + 4*(n%3))}, v4 offset:{OL + (n&1)*3072 + (n>>1)*1024}')
for n in range(3): rdo(n)
for n in range(6):
    a(f's_waitcnt lgkmcnt({min(2, 5-n)})')
    for f in range(2):
        c = vr(68 + 4*(f*2 + (n&1))); a(f'{MF} {c}, {vr(WPR[(n>>1)*2+f])}, {vr(84 + 4*(n%3))}, {c if n > 1 else 0}')
    if n + 3 < 6: rdo(n + 3)
X = [(68, 76), (72, 80)]
a(f's_mul_i32 s44, s4, {S}\ns_add_u32 s36, s38, s44\ns_add_u32 s44, s36, {P2}\ns_add_u32 s45, s44, 12288')
a(f's_mul_i32 s37, s30, 12\ns_add_u32 s37, s37, s3\ns_lshl_b32 s37, s37, 7\ns_add_u32 s46, s37, {F3}\ns_lshl_b32 s47, s4, 2\ns_add_u32 s47, s47, s46')
for t in range(2):
    packx(84 + 4*t, X[t]); a(f'buffer_store_dwordx4 {vr(84+4*t)}, v4, s[8:11], s{44+t} offen sc1')
publish(47); stamp(14)
a('s_setprio 0\ns_cmp_ge_u32 s3, 6\ns_cbranch_scc1 k4_h')
lin_loads(W1R[:12], 39); a.label('k4_h')
def gather3(base):
    for t in range(2):
        for s in range(1, 4):
            a(f's_add_u32 s44, s4, {s}\ns_and_b32 s44, s44, 3\ns_mul_i32 s44, s44, {S}\ns_add_u32 s44, s44, s38\ns_add_u32 s44, s44, {base + t*12288}')
            a(f'buffer_load_dwordx4 {vr(144 + 12*t + 4*(s-1))}, v4, s[8:11], s44 offen sc1')
    for t in range(2):
        madd(X[t], XR + 4*t)
        for s in range(3):
            a(f's_waitcnt vmcnt({5 - 3*t - s})'); madd(X[t], 144 + 12*t + 4*s)
mk_sel(84); mk_ar(92)
spoll([(48, 4, 46, 0)], 4); stamp(15)
gather3(P2)
for t in range(2): packx(XR + 4*t, X[t]); madd(X[t], XR + 4*t, True)
stamp(16)
def w1b():
    a('s_cmp_ge_u32 s3, 6\ns_cbranch_scc1 k4_i')
    lin_loads(W1R[12:], 39, 12); a.label('k4_i')
ln_tail(X, 144, w1b); stamp(17)
gemm(12, 2, W1R, 144, 68, False, HL, 12288, vm=lambda k: (22 - 2*k + 2*min(k, NL)) if k >= 6 else 63, post=lambda k: lin_loads(W1R[2*k:2*k+2], 65, 2*k) if k < NL else None)
a(f's_lshl_b32 s44, s3, 13\nv_add_u32 v11, s44, v4\nv_add_u32 v11, {EX}, v11')
for i in range(8): a(f'ds_read_b128 {vr(W1R[16+i])}, v11 offset:{1024*i}')
stamp(18)
ga = -2 * math.sqrt(2 / math.pi) * math.log2(math.e)
a(f'v_mov_b32 v11, {hex(f2u(ga * 0.044715))}\nv_mov_b32 v10, {hex(f2u(ga))}')
for t in range(2):
    e = [vr(68 + 4*(p*2+t) + r, 2) for p in range(2) for r in (0, 2)]
    T = 144 + 8*t
    tt = [vr(T + 2*k, 2) for k in range(4)]
    for y, x in zip(tt, e): a(f'v_pk_mul_f32 {y}, {x}, {x}')
    for y, x in zip(tt, e): a(f'v_pk_fma_f32 {y}, {y}, v[10:11], v[10:11] op_sel:[0,1,0] op_sel_hi:[1,1,0]')
    for y, x in zip(tt, e): a(f'v_pk_mul_f32 {y}, {y}, {x}')
    for k in range(8): a(f'v_exp_f32 v{T+k}, v{T+k}')
    for y, x in zip(tt, e): a(f'v_pk_add_f32 {y}, {y}, 1.0 op_sel_hi:[1,0]')
    for k in range(8): a(f'v_rcp_f32 v{T+k}, v{T+k}')
    for y, x in zip(tt, e): a(f'v_pk_mul_f32 {y}, {y}, {x}')
    for k in range(4): a(f'v_cvt_pk_bf16_f32 v{T+k}, v{T+2*k}, v{T+2*k+1}')
    a(f'ds_write_b128 v5, {vr(T)} offset:{GL + t*12288}')
a('s_waitcnt lgkmcnt(0)\ns_barrier'); stamp(19)
def w2post(n):
    if NL + n < 8: lin_loads(W1R[2*(NL+n):2*(NL+n)+2], 65, 2*(NL+n))
w2post(0)
gemm(12, 2, W1R, 144, 68, False, GL, 12288, vm=lambda n: 63 if n < 4 else 2*min(8, NL+n+1) - 2*(n-4) - 2, post=lambda n: w2post(n+1), order=[8,9,10,11,0,1,2,3,4,5,6,7])
stamp(20)
a(f's_add_u32 s46, s37, {F4}\ns_lshl_b32 s47, s4, 2\ns_add_u32 s47, s47, s46')
sdiv(64, 3, 3)
a('s_cmp_eq_u32 s64, s4\ns_cbranch_scc1 k5_own')
a(f's_add_u32 s44, s36, {P3}\ns_add_u32 s45, s44, 12288')
for t in range(2):
    packx(84 + 4*t, X[t]); a(f'buffer_store_dwordx4 {vr(84+4*t)}, v4, s[8:11], s{44+t} offen sc1')
publish(47); finish(21)
a.label('k5_own'); a.fence()
publish(47)
spoll([(48, 4, 46, 0)], 4); stamp(21)
gather3(P3)
for t in range(2):
    packx(84 + 4*t, X[t]); a(f'buffer_store_dwordx4 {vr(84+4*t)}, v0, s[24:27], s{33+t} offen')
l = L()
a(f's_cmp_lg_u32 s2, {NRP}\ns_cbranch_scc1 {l}\ns_cmp_lg_u32 s3, 0\ns_cbranch_scc1 {l}\ns_mov_b32 s47, {EPO}')
publish(47); a.label(l)
finish(22)
a.label('repack'); a.hist = []
a('s_mul_i32 s4, s2, 12\ns_add_u32 s4, s4, s3\ns_waitcnt lgkmcnt(0)')
a(f's_add_u32 s46, s8, {EPO}\ns_addc_u32 s47, s9, 0\ns_load_dword s43, s[46:47], 0')
a('s_cmp_ge_u32 s4, 648\ns_cbranch_scc1 rp4\ns_cmp_ge_u32 s4, 288\ns_cbranch_scc1 rp2')
for which in (0, 1):
    if which == 0: a('s_cmp_ge_u32 s4, 144\ns_cbranch_scc1 rp1')
    else: a.label('rp1'); a('s_sub_u32 s4, s4, 144')
    ld, w = (2304, 3) if which == 0 else (3072, 4)
    srd(12, 54 if which == 0 else 58, 884736 if which == 0 else S)
    sdivmod(5, 6, 4, 12)
    a(f's_mul_i32 s44, s6, 11\ns_lshr_b32 s44, s44, 5\ns_mul_i32 s44, s44, 72\ns_lshl_b32 s45, s6, 3\ns_add_u32 s44, s44, s45\ns_mul_i32 s44, s44, {ld}\ns_mul_i32 s45, s5, {64*w}\ns_add_u32 s44, s44, s45')
    a(f'v_mul_u32_u24 v10, {24*ld}, v3\nv_mul_u32_u24 v11, {4*w}, v2\nv_add_u32 v10, v10, v11')
    for j in range(8): a(f'buffer_load_dwordx{w} {vr(16 + 4*j, w)}, v10, s[12:15], s44 offen\ns_add_u32 s44, s44, {ld}')
    a(f's_lshl_b32 s47, s5, 7\ns_lshl_b32 s45, s6, 2\ns_add_u32 s47, s47, s45\ns_add_u32 s47, s47, {FRQ if which == 0 else FR1}')
    if which == 0:
        a(f's_and_b32 s28, s5, 3\ns_mul_i32 s28, s28, 6\ns_lshr_b32 s29, s5, 2\ns_mul_i32 s44, s29, 3\ns_add_u32 s44, s44, s28\ns_mul_i32 s44, s44, 24576\ns_lshl_b32 s45, s6, 11\ns_add_u32 s44, s44, s45')
        a(f's_mul_i32 s30, s28, 12288\ns_lshl_b32 s45, s6, 10\ns_add_u32 s30, s30, s45\ns_add_u32 s30, s30, {24*24576}')
        a(f's_mov_b32 s33, 12288\ns_cmp_eq_u32 s29, 2\ns_cselect_b32 s44, s30, s44\ns_cselect_b32 s30, s33, 1024\ns_cselect_b32 s31, s33, 23552\ns_add_u32 s44, s44, {WQ}')
    else:
        a(f's_mul_i32 s44, s5, 98304\ns_lshl_b32 s45, s6, 11\ns_add_u32 s44, s44, s45\ns_add_u32 s44, s44, {W1P}\ns_mov_b32 s30, 1024\ns_mov_b32 s31, 23552')
    a('s_waitcnt vmcnt(0) lgkmcnt(0)\ns_add_u32 s43, s43, 1')
    perms(16, 4, w, 48)
    for f in range(2*w): a(f'buffer_store_dwordx4 {vr(48 + 4*f)}, v4, s[8:11], s44 offen sc1\ns_add_u32 s44, s44, s{30 + (f&1)}')
    publish(47); a('s_branch pf')
a.label('rp2'); a.hist = []
for which in (0, 1):
    if which == 0: a('s_cmp_ge_u32 s4, 360\ns_cbranch_scc1 rp3\ns_sub_u32 s4, s4, 288')
    else: a.label('rp3'); a('s_sub_u32 s4, s4, 360')
    srd(12, 56 if which == 0 else 60, 294912 if which == 0 else S)
    sdivmod(6, 5, 4, 12)
    scol(28, 5)
    a(f'v_lshrrev_b32 v10, 2, v2\nv_mul_u32_u24 v10, 48, v10\nv_and_b32 v11, 3, v2\nv_lshl_add_u32 v10, v11, 2, v10\nv_mul_u32_u24 v11, {(24 if which == 0 else 32)*768}, v3\nv_add3_u32 v10, v10, v11, s28')
    for b in range(2):
        a(f's_lshl_b32 s29, s6, 1\ns_add_u32 s29, s29, {b}')
        if which == 0:
            sdivmod(30, 31, 29, 3)
            a(f's_mul_i32 s46, s30, 96\ns_lshl_b32 s45, s31, 1\ns_add_u32 s46, s46, s45\ns_mul_i32 s{32+b}, s30, 12\ns_add_u32 s{32+b}, s{32+b}, s5\ns_mul_i32 s{32+b}, s{32+b}, 6144\ns_lshl_b32 s45, s31, 11\ns_add_u32 s{32+b}, s{32+b}, s45\ns_add_u32 s{32+b}, s{32+b}, {WP}')
        else:
            sdivmod(30, 31, 29, 12)
            a(f's_lshr_b32 s46, s29, 2\ns_lshl_b32 s46, s46, 7\ns_and_b32 s45, s29, 3\ns_lshl_b32 s45, s45, 1\ns_add_u32 s46, s46, s45\ns_mul_i32 s{32+b}, s30, 12\ns_add_u32 s{32+b}, s{32+b}, s5\ns_mul_i32 s{32+b}, s{32+b}, 24576\ns_lshl_b32 s45, s31, 11\ns_add_u32 s{32+b}, s{32+b}, s45\ns_add_u32 s{32+b}, s{32+b}, {W2P}')
        a('s_mul_i32 s46, s46, 768')
        for j in range(8):
            row = (6 if which == 0 else 8)*(j&3) + (j>>2)
            a(f's_add_u32 s44, s46, {row*768}\nbuffer_load_dword v{16 + 8*b + j}, v10, s[12:15], s44 offen')
    a(f's_lshl_b32 s47, s5, 7\ns_lshl_b32 s45, s6, 2\ns_add_u32 s47, s47, s45\ns_add_u32 s47, s47, {FRP if which == 0 else FR2}')
    a('s_waitcnt vmcnt(0) lgkmcnt(0)\ns_add_u32 s43, s43, 1')
    for b in range(2):
        perms(16 + 8*b, 1, 1, 32 + 8*b)
        for f in range(2): a(f'buffer_store_dwordx4 {vr(32 + 8*b + 4*f)}, v4, s[8:11], s{32+b} offen offset:{f*1024} sc1')
    publish(47); a('s_branch pf')
a.label('rp4'); a('s_waitcnt lgkmcnt(0)\ns_add_u32 s43, s43, 1')
a.label('pf'); a.fence(); stamp(1)
a(f's_lshr_b32 s4, s2, 3\ns_mul_i32 s5, s3, 7\ns_add_u32 s4, s4, s5\nv_mul_u32_u24 v4, {TS}, v1\ns_mov_b32 s7, 48\ns_cmp_ge_u32 s4, 48\ns_cbranch_scc1 pf_n')
a.label('pf_l')
sdivmod(5, 6, 4, 6)
a(f's_cmp_ge_u32 s6, 3\ns_cselect_b32 s6, 4, 0\ns_add_u32 s46, s5, s6')
sdiv(5, 4, 3)
a(f's_cmp_ge_u32 s4, 24\ns_cselect_b32 s46, s5, s46\ns_lshl_b32 s46, s46, 7\ns_add_u32 s46, s46, {FRQ}\ns_mov_b32 s28, 0\ns_mov_b32 s29, 11\ns_cmp_lt_u32 s4, 36\ns_cbranch_scc1 pf_go')
a(f's_mul_i32 s5, s5, 3\ns_sub_u32 s5, s4, s5\ns_lshl_b32 s46, s5, 9\ns_add_u32 s46, s46, {FRP}\ns_mov_b32 s28, 128\ns_mov_b32 s29, 5\ns_cmp_lt_u32 s4, 48\ns_cbranch_scc1 pf_go')
a(f's_lshr_b32 s46, s4, 2\ns_lshl_b32 s46, s46, 7\ns_add_u32 s46, s46, {FR1 - 12*128}\ns_mov_b32 s28, 0\ns_mov_b32 s29, 11\ns_cmp_lt_u32 s4, 96\ns_cbranch_scc1 pf_go')
sdivmod(5, 6, 4, 12)
a(f's_lshl_b32 s46, s6, 7\ns_mul_i32 s5, s5, 24\ns_add_u32 s46, s46, s5\ns_add_u32 s46, s46, {FR2 - 8*24}\ns_mov_b32 s29, 5')
a.label('pf_go')
a('v_min_u32 v10, s29, v2\nv_lshl_add_u32 v10, v10, 2, s46\nv_mad_u32_u24 v10, v3, s28, v10')
poll(10, 0x400, 'the_end')
a(f's_mul_i32 s44, s4, 24576\ns_add_u32 s44, s44, {WQ}')
for i in range(24576 // (64*TS)): a(f'buffer_load_dword v{16+i}, v4, s[8:11], s44 offen sc1\ns_add_u32 s44, s44, {64*TS}\ns_waitcnt vmcnt(0)')
a.label('pf_n')
if THR:
    a(f's_cmp_lg_u32 s7, 48\ns_cbranch_scc1 pf_m\ns_min_u32 s46, s4, 71\ns_lshl_b32 s46, s46, 7\ns_add_u32 s46, s46, {F1}\nv_lshl_add_u32 v10, v2, 2, s46')
    poll(10, 0x40); a.label('pf_m')
a(f's_cmp_ge_u32 s3, {NW}\ns_cbranch_scc1 the_end\ns_add_u32 s4, s4, s7\ns_mov_b32 s7, {7*NW}\ns_cmp_lt_u32 s4, 144\ns_cbranch_scc1 pf_l\ns_waitcnt vmcnt(0)')
finish(2)
a.label('the_end'); a('s_endpgm')
hdr = open('standalone__video_videomae__vision.s.ref').read().split('; Override')[0]
out = hdr + f'; @launch grid=({NRP+192},1,1) block=(768,1,1) lds=163840\n.amdgcn_target "amdgcn-amd-amdhsa--gfx950"\n.text\n' + a.text() + f'''.section .rodata,"a"
.p2align 6
.amdhsa_kernel {NAME}
  .amdhsa_next_free_vgpr 168
  .amdhsa_next_free_sgpr 102
  .amdhsa_accum_offset 168
  .amdhsa_group_segment_fixed_size 0
  .amdhsa_kernarg_size 80
  .amdhsa_user_sgpr_count 2
  .amdhsa_user_sgpr_kernarg_segment_ptr 1
  .amdhsa_system_sgpr_workgroup_id_x 1
.end_amdhsa_kernel
'''
open(sys.argv[1], 'w').write(out)
```

```python
import sys, math, struct
from emit import Asm
S = 1179648
P1, KF, VF, P2, P3, WQ, WP, W1P, W2P, FLG = 0, 6*S, 7*S, 8*S, 13*S, 21*S, 21*S+884736, 22*S, 23*S, 25*S
F1, F2K, F2V, F3, F4, FRQ, FR1, FRP, FR2, EPO = [FLG + 128*x for x in (0, 72, 264, 360, 936, 1512, 1524, 1536, 1548, 1560)]
WSN = 26*S
F1 = FLG + 0x80000
WPT, FRT = 24*S, FLG + 128*1562
def f2u(x): return struct.unpack('<I', struct.pack('<f', x))[0]
SC = (96 ** -0.5) * math.log2(math.e)
MF = 'v_mfma_f32_16x16x32_bf16'
def vr(a, n=4): return f'v[{a}:{a+n-1}]'
a = Asm()
DIAG = '--diag' in sys.argv
TLB = '--tlb' in sys.argv
CPF = '--cpf' in sys.argv
SL = int(sys.argv[sys.argv.index('--sl')+1]) if '--sl' in sys.argv else 3
SB = 0x100 if '--sb' in sys.argv else 0x10000
THR = '--thr' in sys.argv
NW = int(sys.argv[sys.argv.index('--nw')+1]) if '--nw' in sys.argv else 3
NL = int(sys.argv[sys.argv.index('--nl')+1]) if '--nl' in sys.argv else 4
GD = '--gd' in sys.argv
NPRE = int(sys.argv[sys.argv.index('--npre')+1]) if '--npre' in sys.argv else 2
TS = 64 if '--t64' in sys.argv else 128
SEL = 56 + 77
NRP = 56
lab = [0]
def L(): lab[0] += 1; return f'L{lab[0]}'
def stamp(i):
    if GD: a(f's_memrealtime s[66:67]\ns_waitcnt lgkmcnt(0)\ns_mov_b32 s{70+i}, s66')
    elif DIAG: a(f's_memtime s[66:67]\ns_waitcnt lgkmcnt(0)\ns_sub_u32 s{70+i}, s66, s98')
def finish(n):
    if DIAG:
        a('s_waitcnt vmcnt(0)'); stamp(n)
        l = L()
        a((f's_cmp_lg_u32 s3, {0 if n == 2 else 11}\ns_cbranch_scc1 {l}\ns_lshl_b32 s44, s2, 7\n' if GD else f's_cmp_lg_u32 s2, {SEL}\ns_cbranch_scc1 {l}\ns_lshl_b32 s44, s3, 7\n') + f's_add_u32 s44, s44, {FLG + 0x40000}\nv_mov_b32 v1, 0')
        for i in range(28): a(f'v_mov_b32 v2, s{70+i}\nbuffer_store_dword v2, v1, s[8:11], s44 offen offset:{4*i}')
        a.label(l)
    a('s_endpgm')
def srd(d, p, nb): a(f's_mov_b32 s{d}, s{p}\ns_mov_b32 s{d+1}, s{p+1}\ns_mov_b32 s{d+2}, {nb}\ns_mov_b32 s{d+3}, 0x20000')
def sdiv(dst, src, d): a(f's_mul_i32 s{dst}, s{src}, {65536 // d + 1}\ns_lshr_b32 s{dst}, s{dst}, 16')
def sdivmod(q, r, src, d): sdiv(q, src, d); a(f's_mul_i32 s{r}, s{q}, {d}\ns_sub_u32 s{r}, s{src}, s{r}')
def lin_loads(regs, sbase, first=0):
    for n, r in enumerate(regs):
        i = first + n
        if n == 0 or i % 4 == 0: a(f's_add_u32 s44, s{sbase}, {(i // 4) * 4096}')
        a(f'buffer_load_dwordx4 {vr(r)}, v4, s[8:11], s44 offen offset:{(i % 4) * 1024} sc1')
def greduce(v, t, op):
    a(f'v_mov_b32 v{t}, v{v}\nv_permlane32_swap_b32 v{v}, v{t}\n{op} v{v}, v{v}, v{t}')
    a(f'v_mov_b32 v{t}, v{v}\nv_permlane16_swap_b32 v{v}, v{t}\n{op} v{v}, v{v}, v{t}')
def greduce_n(vs, t, op):
    for sw in ('32', '16'):
        for k, v in enumerate(vs): a(f'v_mov_b32 v{t+k}, v{v}')
        for k, v in enumerate(vs): a(f'v_permlane{sw}_swap_b32 v{v}, v{t+k}')
        for k, v in enumerate(vs): a(f'{op} v{v}, v{v}, v{t+k}')
def xred_write(v, n, t, op, off):
    greduce_n(list(range(v, v+n)), t, op)
    a(f'ds_write_b{32*n} v{6 if n == 4 else 8}, {vr(v, n)} offset:{off}')
def xred_read(v, n, t, op, off):
    for k in range(3): a(f'ds_read_b{32*n} {vr(t + n*k, n)}, v{7 if n == 4 else 9} offset:{off + 4*n*k}')
    a('s_waitcnt lgkmcnt(0)')
    for k in range(n):
        if op == 'v_max_f32': a(f'v_max3_f32 v{v+k}, v{t+k}, v{t+n+k}, v{t+2*n+k}')
        else: a(f'v_add_f32 v{v+k}, v{t+k}, v{t+n+k}\nv_add_f32 v{v+k}, v{v+k}, v{t+2*n+k}')
    greduce_n(list(range(v, v+n)), t, op)
C = {}
PS = [1]
QH = int(sys.argv[sys.argv.index('--qh')+1]) if '--qh' in sys.argv else 8
def mk_ar(b):
    C['ar'] = b; a('v_lshrrev_b32 v11, 2, v2')
    for r in range(4): a(f'v_cmp_eq_u32 vcc, {r}, v11\nv_cndmask_b32_e64 v{b+r}, 0, 1.0, vcc')
def mk_sel(b):
    C['sel'] = b; a('v_lshlrev_b32 v11, 2, v3\nv_sub_u32 v11, v2, v11')
    for r in range(4): a(f'v_cmp_eq_u32 vcc, {r}, v11\nv_cndmask_b32_e64 v{b+4+r}, 0, 1.0, vcc\nv_lshrrev_b32 v{b+r}, 16, v{b+4+r}')
def gsum(d, v, n):
    for r in range(n): a(f'v_mfma_f32_16x16x4_f32 {vr(d)}, v{C["ar"]+r}, v{v+r}, {vr(d) if r else 0}')
def madd(X, r, first=False):
    for q in range(2): a(f'{MF} {vr(X[q])}, {vr(C["sel"]+4*q)}, {vr(r)}, {0 if first else vr(X[q])}')
def poll(va, bound=0x8000, fail=None):
    l, d = L(), L()
    a(f's_mov_b32 s45, {bound}'); a.label(l)
    a(f'buffer_load_dword v11, v{va}, s[8:11], 0 offen sc1\ns_waitcnt vmcnt(0)\nv_cmp_ne_u32 vcc, s43, v11\ns_nop 1\ns_cbranch_vccz {d}')
    a(f's_sub_u32 s45, s45, 1\ns_cbranch_scc1 {fail or d}\ns_sleep {PS[0]}\ns_branch {l}'); a.label(d)
def spoll(lds, n, fb=None):
    l, d = L(), L()
    a(f's_mov_b32 s45, {SB}'); a.label(l)
    for dst, w, so, im in lds: a(f's_load_dwordx{w} s[{dst}:{dst+w-1}], s[8:9], s{so} offset:{im}' + ('' if fb else ' glc'))
    a('s_waitcnt lgkmcnt(0)')
    if n & 1: a(f's_mov_b32 s{48+n}, s43')
    for k in range(48, 48 + n, 2): a(f's_xor_b64 s[{k}:{k+1}], s[{k}:{k+1}], s[100:101]')
    for k in range(50, 48 + n, 2): a(f's_or_b64 s[48:49], s[48:49], s[{k}:{k+1}]')
    if fb:
        a(f's_cbranch_scc0 {d}'); flag_addr(10, fb); poll(10)
    else: a(f's_cbranch_scc0 {d}\ns_sub_u32 s45, s45, 1\ns_cbranch_scc1 {d}\ns_sleep {SL}\ns_branch {l}')
    a.label(d)
def flag_addr(va, groups):
    g0 = groups[0]
    a(f'v_min_u32 v{va}, {g0[1]-1}, v2\nv_lshl_add_u32 v{va}, v{va}, 2, s{g0[0]}')
    for k, (sb, n) in enumerate(groups[1:], 1):
        a(f'v_min_u32 v11, {n-1}, v2\nv_lshl_add_u32 v11, v11, 2, s{sb}\nv_cmp_eq_u32 vcc, {k}, v3\nv_cndmask_b32 v{va}, v{va}, v11, vcc')
def publish(sf):
    a(f'v_mov_b32 v11, s43\nv_mov_b32 v10, 0\ns_waitcnt vmcnt(0)\ns_mov_b64 exec, 1\nbuffer_store_dword v11, v10, s[8:11], s{sf} offen sc1\ns_mov_b64 exec, -1')
def unpack(dl, dh, r):
    for k in range(4): a(f'v_lshlrev_b32 v{dl+k}, 16, v{r+k}\nv_and_b32 v{dh+k}, s42, v{r+k}')
def addsrc(X, r, T):
    unpack(T, T+4, r)
    for q in range(2):
        for k in (0, 2): a(f'v_pk_add_f32 {vr(X[q]+k,2)}, {vr(X[q]+k,2)}, {vr(T+4*q+k,2)}')
def packx(d, X):
    for k in range(4): a(f'v_cvt_pk_bf16_f32 v{d+k}, v{X[0]+k}, v{X[1]+k}')
HL, ST, OL, QL, PL, EX = 0, 24576, 28672, 34816, 40960, 65536
MX, SM, GL, QK = ST, ST + 1536, PL, HL
XR = 12
def ln_tail(X, T, mid=None):
    s = T + 12
    for t in range(2):
        p = [vr(X[t][q]+k, 2) for q in range(2) for k in (0, 2)]
        a(f'v_pk_add_f32 {vr(T,2)}, {p[0]}, {p[1]}\nv_pk_mul_f32 {vr(T+2,2)}, {p[0]}, {p[0]}\nv_pk_add_f32 {vr(T,2)}, {vr(T,2)}, {p[2]}')
        a(f'v_pk_fma_f32 {vr(T+2,2)}, {p[1]}, {p[1]}, {vr(T+2,2)}\nv_pk_add_f32 {vr(T,2)}, {vr(T,2)}, {p[3]}')
        a(f'v_pk_fma_f32 {vr(T+2,2)}, {p[2]}, {p[2]}, {vr(T+2,2)}\nv_pk_fma_f32 {vr(T+2,2)}, {p[3]}, {p[3]}, {vr(T+2,2)}')
        a(f'v_add_f32 v{s+2*t}, v{T}, v{T+1}\nv_add_f32 v{s+2*t+1}, v{T+2}, v{T+3}')
    gsum(T+4, s, 4)
    a('v_and_b32 v10, 3, v2\nv_cmp_eq_u32 vcc, v10, v3\nv_cndmask_b32_e64 v10, 0, 1.0, vcc')
    a(f'ds_write_b32 v6, v{T+4} offset:{ST}\ns_waitcnt lgkmcnt(0)\ns_barrier')
    for k in range(3): a(f'ds_read_b128 {vr(T + 4*k)}, v7 offset:{ST + 16*k}')
    if mid: mid()
    a('s_waitcnt lgkmcnt(0)')
    for k in (1, 2):
        for j in (0, 2): a(f'v_pk_add_f32 {vr(T+j,2)}, {vr(T+j,2)}, {vr(T+4*k+j,2)}')
    a(f'v_pk_add_f32 {vr(T,2)}, {vr(T,2)}, {vr(T+2,2)}\nv_add_f32 v{T}, v{T}, v{T+1}\nv_mfma_f32_16x16x4_f32 {vr(s)}, v10, v{T}, 0')
    for t in range(2):
        m, q = s + 2*t, s + 2*t + 1
        a(f'v_mul_f32 v{m}, {hex(f2u(1/384))}, v{m}\nv_mul_f32 v{q}, {hex(f2u(1/384))}, v{q}\nv_fma_f32 v{q}, -v{m}, v{m}, v{q}')
        a(f'v_max_f32 v{q}, 0, v{q}\nv_add_f32 v{q}, {hex(f2u(1e-5))}, v{q}\nv_rsq_f32 v{q}, v{q}\nv_mul_f32 v{m}, -v{m}, v{q}')
    for t in range(2):
        for q in range(2):
            for k in (0, 2):
                p = vr(X[t][q]+k, 2)
                a(f'v_pk_fma_f32 {p}, {p}, {vr(s+2*t,2)}, {vr(s+2*t,2)} op_sel:[0,1,0] op_sel_hi:[1,1,0]')
        packx(T + 4*t, X[t])
        a(f'ds_write_b128 v5, {vr(T+4*t)} offset:{HL + t*12288}')
    a('s_waitcnt lgkmcnt(0)\ns_barrier')
def gemm(nk, nf, Wr, B, acc, swap, boff, tstride, vm=None, post=None, order=None):
    order = order or list(range(nk))
    def rd(k):
        for t in range(2): a(f'ds_read_b128 {vr(B + 4*((k%2)*2 + t))}, v4 offset:{boff + t*tstride + order[k]*1024}')
    rd(0)
    for k in range(nk):
        if k + 1 < nk: rd(k + 1)
        a(f's_waitcnt lgkmcnt({2 if k+1 < nk else 0})' + (f' vmcnt({vm(k)})' if vm else ''))
        for f in range(nf):
            for t in range(2):
                w = vr(Wr[order[k]*nf + f]); b = vr(B + 4*((k%2)*2 + t)); c = vr(acc + 4*(f*2 + t))
                x, y = (b, w) if swap else (w, b)
                a(f'{MF} {c}, {x}, {y}, {c if k else 0}')
        if post: post(k)
def perms(raw, stride, w, dst):
    for f in range(2*w):
        m, p = f >> 1, f & 1
        for d in range(4): a(f'v_perm_b32 v{dst + 4*f + d}, v{raw + (2*d+1)*stride + m}, v{raw + 2*d*stride + m}, s{40+p}')
def scol(dst, k):
    a(f's_mul_i32 s{dst}, s{k}, 11\ns_lshr_b32 s{dst}, s{dst}, 5\ns_mul_i32 s{dst}, s{dst}, 144\ns_lshl_b32 s45, s{k}, 4\ns_add_u32 s{dst}, s{dst}, s45')
NAME = 'standalone__video_videomae__vision_kernel'
a.raw(f'.globl {NAME}\n.p2align 8\n.type {NAME},@function\n{NAME}:')
if DIAG: a('s_memtime s[98:99]')
if GD: a('s_memrealtime s[96:97]')
a(f's_cmp_ge_u32 s2, {NRP+192}\ns_cbranch_scc1 the_end')
a('s_load_dwordx16 s[48:63], s[0:1], 0\ns_load_dwordx2 s[8:9], s[0:1], 72')
a('v_lshrrev_b32 v5, 6, v0\nv_and_b32 v1, 63, v0\nv_readfirstlane_b32 s3, v5\nv_and_b32 v2, 15, v0\nv_bfe_u32 v3, v0, 4, 2\nv_lshlrev_b32 v4, 4, v1')
a(f's_mov_b32 s10, {WSN}\ns_mov_b32 s11, 0x20000\ns_mov_b32 s40, 0x05040100\ns_mov_b32 s41, 0x07060302\ns_mov_b32 s42, 0xffff0000')
a(f's_cmp_lt_u32 s2, {NRP}\ns_cbranch_scc1 repack')
a(f's_sub_u32 s46, s2, {NRP}\ns_and_b32 s47, s46, 7\ns_lshr_b32 s46, s46, 3\ns_and_b32 s4, s46, 3\ns_lshr_b32 s5, s47, 1\ns_and_b32 s44, s47, 1')
a('s_mul_i32 s6, s44, 6\ns_lshr_b32 s45, s46, 2\ns_add_u32 s6, s6, s45\ns_lshl_b32 s7, s5, 2\ns_add_u32 s7, s7, s4')
a('s_mov_b32 s28, s5\ns_lshl_b32 s29, s46, 1\ns_add_u32 s29, s29, s44\ns_mul_i32 s30, s5, 12\ns_add_u32 s30, s30, s6\ns_lshl_b32 s31, s30, 1')
scol(32, 3)
a('v_and_b32 v10, 3, v2\nv_mul_u32_u24 v10, 384, v10\nv_lshrrev_b32 v11, 2, v2\ns_lshl_b32 s44, s29, 3\nv_add3_u32 v10, v10, v11, s44\nv_mul_u32_u24 v10, 768, v10')
a('v_mul_u32_u24 v11, 48, v3\nv_add_u32 v10, v10, v11\nv_mul_u32_u24 v9, 768, v2\nv_add_u32 v9, v9, v11')
a('s_mul_i32 s33, s31, 12288\ns_add_u32 s33, s33, s32\ns_add_u32 s34, s33, 12288')
a('s_waitcnt lgkmcnt(0)')
a(f's_add_u32 s46, s8, {EPO}\ns_addc_u32 s47, s9, 0\ns_load_dword s43, s[46:47], 0')
srd(12, 48, S); srd(16, 50, 884736); srd(24, 62, S)
stamp(0)
a(f'buffer_load_dwordx4 {vr(20)}, v10, s[12:15], s32 offen\nbuffer_load_dwordx4 {vr(24)}, v10, s[12:15], s32 offen offset:3072')
def common_addrs():
    a('v_mov_b32 v0, v9\ns_lshl_b32 s44, s3, 10\nv_add_u32 v5, s44, v4')
    a('v_mul_u32_u24 v7, 192, v2\ns_lshl_b32 s44, s3, 4\nv_add_u32 v6, s44, v7\nv_lshrrev_b32 v8, 1, v6\nv_mad_u32_u24 v7, v3, 48, v7\nv_lshrrev_b32 v9, 1, v7\ns_lshl_b32 s44, s3, 2\nv_add_u32 v6, s44, v7')
def ln1(after, mid):
    X = [(28, 32), (36, 40)]
    mk_ar(60)
    for t in range(2):
        if t == 0: stamp(23)
        a(f's_waitcnt vmcnt({after + (1 - t if after > 0 else 0)})'); unpack(X[t][0], X[t][1], 20 + 4*t)
    stamp(24)
    ln_tail(X, 44, mid)
    a('s_add_u32 s43, s43, 1\ns_mov_b32 s100, s43\ns_mov_b32 s101, s43')
a('s_lshr_b32 s47, s29, 3\ns_sub_u32 s44, s3, 6\ns_cmp_eq_u32 s44, 3\ns_cbranch_scc1 k1_tx\ns_cmp_ge_u32 s44, 3\ns_cbranch_scc1 k1_nt')
a('s_lshr_b32 s45, s29, 1\ns_mul_i32 s45, s45, 3\ns_add_u32 s44, s44, s45\ns_lshl_b32 s44, s44, 6\nv_add_u32 v11, s44, v1\ns_cmp_ge_u32 s44, 3456\ns_cbranch_scc1 k1_nt')
a('v_mul_u32_u24 v10, 21846, v11\nv_lshrrev_b32 v10, 16, v10\nv_mul_u32_u24 v10, 576, v10\nv_lshl_add_u32 v10, v11, 6, v10\ns_mul_i32 s44, s28, 192\nbuffer_load_dword v28, v10, s[16:19], s44 offen\ns_branch k1_nt')
a.label('k1_tx')
a('v_min_u32 v10, 47, v1\nv_lshlrev_b32 v10, 7, v10\ns_lshl_b32 s44, s31, 1\ns_add_u32 s44, s44, s4\ns_mul_i32 s44, s44, 6144\nbuffer_load_dword v28, v10, s[12:15], s44 offen\ns_branch k1_nt')
a.label('k1_nt')
a('s_mov_b32 s69, s47\ns_barrier\ns_cmp_ge_u32 s3, 6\ns_cbranch_scc1 k1_proj')
sdivmod(35, 36, 3, 3)
RING, FR, B, ACC = 104, 72, 96, 20
a('v_mul_u32_u24 v68, 55296, v3\nv_mul_u32_u24 v69, 12, v2\ns_mul_i32 s44, s36, 768\ns_mul_i32 s45, s28, 192\ns_add_u32 s44, s44, s45\ns_mul_i32 s45, s35, 442368\ns_add_u32 s44, s44, s45\nv_add3_u32 v68, v68, v69, s44')
for q in range(1, 4): a(f'v_add_u32 v{68+q}, {q*4608}, v68')
def wl(k):
    a(f's_mov_b32 s44, {(96*(k//3) + 8*(k%3))*2304}')
    for j in range(8): a(f'buffer_load_dwordx3 {vr(RING + (k%2)*32 + 4*j, 3)}, v{68 + j//2}, s[16:19], s44 offen offset:{(j&1)*2304}')
for k in range(NPRE): wl(k)
def mid1():
    a('s_waitcnt vmcnt(8)'); perms(RING, 4, 3, FR); wl(2)
common_addrs(); ln1(8*NPRE, mid1); stamp(1)
for k in range(NPRE, 2): wl(k)
a('s_mul_i32 s44, s35, 18432\nv_add_u32 v10, s44, v4\ns_mul_i32 s44, s35, 6144\ns_sub_u32 s44, 12288, s44\nv_add_u32 v11, s44, v4')
W2K = [72 + 4*i for i in range(24)]
def rpoll(): spoll([(48, 8, 38, 0), (56, 4, 38, 32)], 12, [(38, 12)])
def rpoll2():
    a(f's_lshl_b32 s46, s3, 7\ns_add_u32 s47, s46, {FR2}\ns_mul_i32 s44, s4, 24\ns_add_u32 s47, s47, s44\ns_add_u32 s46, s46, {FRP}')
    a(f's_mul_i32 s39, s4, 12\ns_add_u32 s39, s39, s3\ns_lshr_b32 s64, s39, 2\ns_lshl_b32 s64, s64, 7\ns_add_u32 s64, s64, {FR1}')
    spoll([(48, 4, 46, 0), (52, 2, 46, 16), (54, 2, 47, 16), (56, 4, 47, 0)], 12, [(46, 6), (47, 6)])
    spoll([(48, 8, 64, 0), (56, 4, 64, 32)], 12, [(64, 12)])
def k2pre(n=24):
    stamp(3)
    if n == 24: a('s_barrier')
    a(f's_lshl_b32 s38, s35, 2\ns_add_u32 s38, s38, s4\ns_lshl_b32 s38, s38, 7\ns_add_u32 s38, s38, {FRQ}')
    rpoll()
    a(f's_mul_i32 s46, s4, 6\ns_add_u32 s46, s46, s3\ns_mul_i32 s46, s46, 24576\ns_add_u32 s46, s46, {WQ}')
    lin_loads(W2K[:n], 46)
for role in ('qk', 'v'):
    if role == 'qk': a('s_cmp_eq_u32 s36, 2\ns_cbranch_scc1 k1_v')
    else: a.label('k1_v')
    for k in range(6):
        for t in range(2): a(f'ds_read_b128 {vr(B + 4*t)}, v{10+t} offset:{HL + k*1024}')
        if k:
            a(f's_waitcnt vmcnt({8 if k < 5 else 0})')
            perms(RING + (k%2)*32, 4, 3, FR)
        a('s_waitcnt lgkmcnt(0)')
        for f in range(6):
            for t in range(2):
                w = vr(FR + 4*f); b = vr(B + 4*t); c = vr(ACC + 4*(f*2 + t))
                x, y = (b, w) if role == 'v' else (w, b)
                a(f'{MF} {c}, {x}, {y}, {c if k else 0}')
        if k and k + 2 < 6: wl(k + 2)
    stamp(2)
    a(f's_lshl_b32 s44, s36, 1\ns_add_u32 s44, s44, s35\ns_mul_i32 s46, s44, 3072\ns_mul_i32 s45, s44, 6144\ns_add_u32 s45, s45, {EX}\nv_add_u32 v10, s45, v4\ns_xor_b32 s44, s44, 1\ns_mul_i32 s45, s44, 6144\ns_add_u32 s45, s45, {EX}\nv_add_u32 v11, s45, v4')
    for f in range(6): a(f'ds_write_b128 v11, {vr(ACC + 8*f + 4)} offset:{f*1024}')
    a('s_waitcnt lgkmcnt(0)\ns_barrier')
    for f in range(6): a(f'ds_read_b128 {vr(ACC + 8*f + 4)}, v10 offset:{f*1024}')
    a('v_add_u32 v10, s46, v4')
    for f in range(6):
        a(f's_waitcnt lgkmcnt({5-f})')
        for k in (0, 2): a(f'v_pk_add_f32 {vr(ACC+8*f+k,2)}, {vr(ACC+8*f+k,2)}, {vr(ACC+8*f+4+k,2)}')
    if role == 'qk':
        for r in range(4):
            for f in (0, 2, 4): a(f'v_cvt_pk_bf16_f32 v{FR + 3*r + f//2}, v{ACC + 8*f + r}, v{ACC + 8*(f+1) + r}')
        for i in range(3): a(f'ds_write_b128 v10, {vr(FR + 4*i)} offset:{QK + i*1024}')
        a('s_waitcnt lgkmcnt(0)\ns_barrier')
        k2pre(QH)
        a('s_barrier\ns_barrier'); lin_loads(W2K[QH:], 46, QH); a('s_branch k2')
    else:
        for f in range(6):
            c = ACC + 8*f
            a(f'v_cvt_pk_bf16_f32 v{FR+4*f}, v{c}, v{c+1}\nv_cvt_pk_bf16_f32 v{FR+4*f+1}, v{c+2}, v{c+3}\nv_mov_b32 v{FR+4*f+2}, 0\nv_mov_b32 v{FR+4*f+3}, 0')
        a(f'v_lshrrev_b32 v11, 2, v2\nv_cmp_eq_u32 vcc, v11, v3\ns_mov_b32 s44, {hex(f2u(SC))}\nv_mov_b32 v102, 0\nv_mov_b32 v103, 0\ns_mul_i32 s46, s35, 3072\nv_add_u32 v10, s46, v4\ns_barrier')
        for i in range(3): a(f'ds_read_b128 {vr(RING + 8*i)}, v10 offset:{QK + i*1024}\nds_read_b128 {vr(RING + 8*i + 4)}, v10 offset:{QK + 6144 + i*1024}')
        c, m = 96, 68
        for i in range(3): a(f's_waitcnt lgkmcnt({4-2*i})\n{MF} {vr(c)}, {vr(RING + 8*i + 4)}, {vr(RING + 8*i)}, {vr(c) if i else 0}')
        a(f'v_max3_f32 v{m}, v{c}, v{c+1}, v{c+2}\nv_max_f32 v{m}, v{m}, v{c+3}\nv_mul_f32 v{m}, s44, v{m}')
        for r in range(4): a(f'v_fma_f32 v{c+r}, v{c+r}, s44, -v{m}')
        for r in range(4): a(f'v_exp_f32 v{c+r}, v{c+r}')
        a(f'v_add_f32 v{m}, v{c}, v{c+1}\nv_add_f32 v{m+1}, v{c+2}, v{c+3}\nv_add_f32 v{m}, v{m}, v{m+1}\nv_rcp_f32 v{m}, v{m}')
        for r in range(4): a(f'v_mul_f32 v{c+r}, v{c+r}, v{m}')
        a(f'v_cvt_pk_bf16_f32 v100, v{c}, v{c+1}\nv_cvt_pk_bf16_f32 v101, v{c+2}, v{c+3}\nv_cndmask_b32 v100, 0, v100, vcc\nv_cndmask_b32 v101, 0, v101, vcc')
        for f in range(6): a(f'{MF} {vr(ACC + 4*f)}, {vr(FR + 4*f)}, {vr(100)}, 0')
        for r in range(4):
            for f in (0, 2, 4): a(f'v_cvt_pk_bf16_f32 v{RING + 3*r + f//2}, v{ACC + 4*f + r}, v{ACC + 4*(f+1) + r}')
        for i in range(3): a(f'ds_write_b128 v10, {vr(RING + 4*i)} offset:{OL + i*1024}')
        a('s_waitcnt lgkmcnt(0)\ns_barrier')
k2pre()
a('s_branch k2')
a.label('k1_proj'); a.hist = []
a('s_sub_u32 s35, s3, 6')
FR = 72
common_addrs(); ln1(0, None); stamp(1)
a('v_and_b32 v70, 3, v2\nv_lshlrev_b32 v70, 8, v70\nv_lshrrev_b32 v71, 2, v2\nv_lshl_add_u32 v71, v3, 2, v71\nv_lshl_add_u32 v70, v71, 4, v70')
a(f's_mul_i32 s36, s29, 24576\ns_mul_i32 s44, s28, {S}\ns_add_u32 s36, s36, s44\ns_lshl_b32 s44, s35, 12\ns_add_u32 s36, s36, s44')
a(f's_lshr_b32 s37, s29, 2\ns_mul_i32 s37, s37, 6\ns_add_u32 s37, s37, s35\ns_lshl_b32 s37, s37, 11\ns_and_b32 s44, s29, 3\ns_lshl_b32 s44, s44, 9\ns_add_u32 s37, s37, s44\ns_lshl_b32 s44, s28, 7\ns_add_u32 s37, s37, s44\ns_add_u32 s37, s37, {F1}')
a(f's_lshl_b32 s46, s35, 8\ns_add_u32 s46, s46, {FRT}\ns_add_u32 s47, s46, 128\ns_lshl_b32 s38, s4, 7\ns_add_u32 s38, s38, {FRQ + 8*128}')
a(f's_mul_i32 s39, s28, 6\ns_add_u32 s39, s39, s35\ns_mul_i32 s39, s39, 12288\ns_add_u32 s39, s39, {WPT}')
PS[0] = 10
spoll([(48, 4, 46, 0), (52, 2, 46, 16), (54, 2, 47, 16), (56, 4, 47, 0)], 12, [(46, 6), (47, 6)])
lin_loads([FR + 4*i for i in range(12)], 39)
rpoll(); PS[0] = 1
W2V = [120 + 4*i for i in range(12)]
a(f's_mul_i32 s46, s4, 6\ns_add_u32 s46, s46, s35\ns_mul_i32 s46, s46, 12288\ns_add_u32 s46, s46, {WQ + 24*24576}')
lin_loads(W2V, 46)
stamp(2); a('s_barrier\ns_setprio 2\ns_barrier\ns_waitcnt vmcnt(12)')
a('s_barrier'); stamp(3)
gemm(3, 4, [FR + 4*((f>>1)*6 + k*2 + (f&1)) for k in range(3) for f in range(4)], 52, 20, False, OL, 3072)
for t in range(2):
    for rho in range(2):
        d = 52 + 4*(t*2+rho); packx(d, (20 + 4*(4*rho + t), 20 + 4*(4*rho + 2 + t)))
        a(f'buffer_store_dwordx4 {vr(d)}, v70, s[8:11], s36 offen offset:{rho*2048 + t*1024} sc1')
a('s_barrier')
publish(37); stamp(25)
a('s_setprio 0')
a.label('k2'); a.fence(); stamp(4)
a(f'buffer_load_dwordx4 {vr(XR)}, v0, s[12:15], s33 offen\nbuffer_load_dwordx4 {vr(XR+4)}, v0, s[12:15], s34 offen')
def dma(q):
    a(f's_add_u32 m0, s64, {4096*q}\ns_add_u32 s44, s65, {16384 + 4096*q}')
    for i in range(4): a(f'buffer_load_dwordx4 v4, s[8:11], s44 offen offset:{1024*i} sc1 lds')
a(f's_mul_i32 s46, s6, 6\ns_lshr_b32 s44, s3, 1\ns_add_u32 s46, s46, s44\ns_lshl_b32 s46, s46, 11\ns_add_u32 s46, s46, {F1}')
a('s_mul_i32 s38, s31, 12288\ns_lshl_b32 s44, s3, 10\ns_add_u32 s38, s38, s44')
mk_sel(60); mk_ar(68)
a('v_lshrrev_b32 v52, 3, v2\nv_mul_u32_u24 v52, 24576, v52\nv_bfe_u32 v53, v2, 2, 1\nv_lshl_add_u32 v52, v53, 10, v52\nv_lshl_add_u32 v52, v3, 6, v52\nv_and_b32 v53, 3, v2\nv_lshl_add_u32 v52, v53, 4, v52')
a('s_mul_i32 s47, s6, 98304\ns_lshl_b32 s44, s3, 11\ns_add_u32 s47, s47, s44\ns_lshl_b32 s44, s5, 8\ns_add_u32 s47, s47, s44')
a('v_lshl_add_u32 v10, v2, 7, s46'); PS[0] = 2; poll(10); PS[0] = 1; stamp(5)
for t in range(2):
    for s in range(4): a(f's_add_u32 s44, s47, {P1 + s*S + t*49152}\nbuffer_load_dwordx4 {vr(20 + 16*t + 4*s)}, v52, s[8:11], s44 offen sc1')
rpoll2()
a(f's_mul_i32 s65, s39, 24576\ns_add_u32 s65, s65, {W2P}\ns_lshl_b32 s64, s3, 13\ns_add_u32 s64, s64, {EX}')
X = [(52, 56), (20, 24)]
for t in range(2):
    if t == 0: a('s_waitcnt vmcnt(8)')
    madd(X[t], XR + 4*t, True)
    for s in range(4):
        a(f's_waitcnt vmcnt({7 - 4*t - s})'); madd(X[t], 20 + 16*t + 4*s)
for t in range(2): packx(XR + 4*t, X[t]); madd(X[t], XR + 4*t, True)
stamp(6)
ln_tail(X, 28, lambda: dma(0)); stamp(7)
dma(1)
a('s_cmp_ge_u32 s3, 6\ns_cbranch_scc1 k2_v')
gemm(12, 2, W2K, 20, 36, False, HL, 12288); stamp(8)
for t in range(2):
    for p in range(2):
        c = 36 + 4*(p*2+t); a(f'v_cvt_pk_bf16_f32 v{52+4*t+2*p}, v{c}, v{c+1}\nv_cvt_pk_bf16_f32 v{53+4*t+2*p}, v{c+2}, v{c+3}')
a('s_cmp_ge_u32 s3, 3\ns_cbranch_scc1 k2_k')
for t in range(2): a(f'ds_write_b128 v5, {vr(52+4*t)} offset:{QL + t*3072}')
a('s_branch k3'); a.label('k2_k')
a(f's_mul_i32 s46, s7, 12\ns_add_u32 s46, s46, s6\ns_mul_i32 s44, s46, 6144\ns_lshl_b32 s45, s36, 10\ns_add_u32 s44, s44, s45\ns_add_u32 s44, s44, {KF}')
for t in range(2): a(f'buffer_store_dwordx4 {vr(52+4*t)}, v4, s[8:11], s44 offen offset:{t*3072} sc1')
a(f's_lshl_b32 s46, s46, 7\ns_lshl_b32 s45, s36, 2\ns_add_u32 s46, s46, s45\ns_add_u32 s46, s46, {F2K}')
publish(46)
a('s_branch k3'); a.label('k2_v'); a.hist = []
gemm(12, 1, W2V, 20, 36, True, HL, 12288); stamp(8)
for t in range(2):
    c = 36 + 4*t; a(f'v_cvt_pk_bf16_f32 v{52+2*t}, v{c}, v{c+1}\nv_cvt_pk_bf16_f32 v{53+2*t}, v{c+2}, v{c+3}')
a(f's_mul_i32 s46, s7, 6\ns_add_u32 s46, s46, s35\ns_mul_i32 s44, s46, 12\ns_add_u32 s44, s44, s6\ns_lshl_b32 s44, s44, 10\ns_add_u32 s44, s44, {VF}')
a(f'buffer_store_dwordx4 {vr(52)}, v4, s[8:11], s44 offen sc1')
a(f's_lshl_b32 s46, s46, 7\ns_lshl_b32 s45, s6, 2\ns_add_u32 s46, s46, s45\ns_add_u32 s46, s46, {F2V}')
publish(46)
a.label('k3'); a.fence(); stamp(9)
a(f's_mul_i32 s46, s39, 6144\ns_add_u32 s46, s46, {WP}')
WPR = [144 + 4*i for i in range(6)]
lin_loads(WPR, 46)
a(f's_sub_u32 s39, s65, {W2P - W1P}')
W1R = [96 + 4*i for i in range(12)] + [20 + 4*i for i in range(12)]
a('s_lshl_b32 s35, s69, 1\ns_add_u32 s35, s35, s3\ns_sub_u32 s44, s35, 12\ns_cmp_ge_u32 s35, 12\ns_cselect_b32 s35, s44, s35')
a('s_min_u32 s44, s3, 5\ns_add_u32 s69, s69, s44\ns_sub_u32 s44, s69, 6\ns_cmp_ge_u32 s69, 6\ns_cselect_b32 s69, s44, s69')
a(f's_mul_i32 s46, s7, 12\ns_add_u32 s46, s46, s35\ns_mul_i32 s36, s46, 6144\ns_add_u32 s36, s36, {KF}\ns_lshl_b32 s46, s46, 7\ns_add_u32 s46, s46, {F2K}')
a(f's_mul_i32 s47, s7, 6\ns_add_u32 s47, s47, s69\ns_mul_i32 s37, s47, 12288\ns_add_u32 s37, s37, {VF}\ns_lshl_b32 s47, s47, 7\ns_add_u32 s47, s47, {F2V}')
a('s_waitcnt lgkmcnt(0)\ns_barrier')
K, Q, SA, T, V = 20, 44, 68, 84, 96
for i in range(6): a(f'ds_read_b128 {vr(Q + 4*i)}, v4 offset:{QL + i*1024}')
spoll([(48, 4, 46, 0)], 3, [(46, 3)] if '--vf2' in sys.argv else None); stamp(10)
lin_loads([K + 4*i for i in range(6)], 36)
a(f's_mov_b32 s64, {hex(f2u(SC))}\ns_waitcnt lgkmcnt(0)')
def smm(ex):
    for tau in range(2):
        a(f's_waitcnt vmcnt({ex + 3*(1-tau)})')
        for i in range(3):
            for u in range(2):
                c = vr(SA + 4*(u*2+tau)); a(f'{MF} {c}, {vr(K + 4*(tau*3+i))}, {vr(Q + 4*(u*3+i))}, {c if i else 0}')
a('s_cmp_lt_u32 s3, 6\ns_cbranch_scc1 k3_v')
smm(0); a('s_branch k3_b'); a.label('k3_v')
spoll([(48, 8, 47, 0), (56, 4, 47, 32)], 12, [(47, 12)])
lin_loads([V + 4*i for i in range(12)], 37)
smm(12); a.label('k3_b'); a('s_nop 7'); stamp(11)
M = 92
for u in range(2):
    e = SA + 8*u
    a(f'v_max3_f32 v{M+u}, v{e}, v{e+1}, v{e+2}\nv_max3_f32 v{M+u}, v{M+u}, v{e+3}, v{e+4}\nv_max3_f32 v{M+u}, v{M+u}, v{e+5}, v{e+6}\nv_max_f32 v{M+u}, v{M+u}, v{e+7}')
xred_write(M, 2, T, 'v_max_f32', MX)
a('s_lshl_b32 s44, s35, 11\nv_add_u32 v10, s44, v4\ns_waitcnt lgkmcnt(0)\ns_barrier')
xred_read(M, 2, T, 'v_max_f32', MX)
for u in range(2): a(f'v_mul_f32 v{M+u}, s64, v{M+u}')
for u in range(2):
    e = SA + 8*u
    for k in range(8): a(f'v_fma_f32 v{e+k}, v{e+k}, s64, -v{M+u}')
    for k in range(8): a(f'v_exp_f32 v{e+k}, v{e+k}')
    for k in range(4): a(f'v_cvt_pk_bf16_f32 v{T+4*u+k}, v{e+2*k}, v{e+2*k+1}')
    a(f'ds_write_b128 v10, {vr(T+4*u)} offset:{PL + u*1024}')
    a(f'v_pk_add_f32 {vr(e,2)}, {vr(e,2)}, {vr(e+2,2)}\nv_pk_add_f32 {vr(e+4,2)}, {vr(e+4,2)}, {vr(e+6,2)}\nv_pk_add_f32 {vr(e,2)}, {vr(e,2)}, {vr(e+4,2)}\nv_add_f32 v{M+2+u}, v{e}, v{e+1}')
xred_write(M+2, 2, SA, 'v_add_f32', SM)
a('s_cmp_lt_u32 s3, 6\ns_cbranch_scc1 k3_c')
lin_loads(W1R[:8], 39); a.label('k3_c')
a('s_waitcnt lgkmcnt(0)\ns_barrier'); stamp(12)
W1R = [96 + 4*i for i in range(12)] + [20 + 4*i for i in range(12)]
a('s_cmp_lt_u32 s3, 6\ns_cbranch_scc1 k3_pv')
lin_loads(W1R[8:], 39, 8)
a('s_branch k3_o'); a.label('k3_pv')
PB = [20 + 4*(i % 12) for i in range(24)]
OA = 68
for i in range(12): a(f'ds_read_b128 {vr(PB[i])}, v4 offset:{PL + i*1024}')
for kb in range(12):
    nrd = min(24, 12 + 2*max(0, kb - 1))
    a(f's_waitcnt vmcnt({11 - kb}) lgkmcnt({nrd - 2*kb - 2})')
    for u in range(2):
        c = vr(OA + 4*u); a(f'{MF} {c}, {vr(V + 4*kb)}, {vr(PB[2*kb+u])}, {c if kb else 0}')
    if kb >= 1:
        for i in range(nrd, min(24, nrd + 2)): a(f'ds_read_b128 {vr(PB[i])}, v4 offset:{PL + i*1024}')
a('s_lshr_b32 s44, s69, 1\ns_lshl_b32 s44, s44, 10\ns_and_b32 s45, s69, 1\ns_lshl_b32 s45, s45, 3\ns_add_u32 s44, s44, s45\nv_add_u32 v10, s44, v4')
xred_read(M, 2, T, 'v_add_f32', SM)
for u in range(2): a(f'v_rcp_f32 v{M+u}, v{M+u}')
for u in range(2):
    c = OA + 4*u
    for r in range(4): a(f'v_mul_f32 v{c+r}, v{c+r}, v{M+u}')
    a(f'v_cvt_pk_bf16_f32 v{c}, v{c}, v{c+1}\nv_cvt_pk_bf16_f32 v{c+1}, v{c+2}, v{c+3}\nds_write_b64 v10, {vr(c,2)} offset:{OL + u*3072}')
a('s_waitcnt lgkmcnt(0)'); a.label('k3_o')
a('s_barrier'); stamp(13)
a('s_setprio 2')
def rdo(n): a(f'ds_read_b128 {vr(84 + 4*(n%3))}, v4 offset:{OL + (n&1)*3072 + (n>>1)*1024}')
for n in range(3): rdo(n)
for n in range(6):
    a(f's_waitcnt lgkmcnt({min(2, 5-n)})')
    for f in range(2):
        c = vr(68 + 4*(f*2 + (n&1))); a(f'{MF} {c}, {vr(WPR[(n>>1)*2+f])}, {vr(84 + 4*(n%3))}, {c if n > 1 else 0}')
    if n + 3 < 6: rdo(n + 3)
X = [(68, 76), (72, 80)]
a(f's_mul_i32 s44, s4, {S}\ns_add_u32 s36, s38, s44\ns_add_u32 s44, s36, {P2}\ns_add_u32 s45, s44, 12288')
a(f's_mul_i32 s37, s30, 12\ns_add_u32 s37, s37, s3\ns_lshl_b32 s37, s37, 7\ns_add_u32 s46, s37, {F3}\ns_lshl_b32 s47, s4, 2\ns_add_u32 s47, s47, s46')
for t in range(2):
    packx(84 + 4*t, X[t]); a(f'buffer_store_dwordx4 {vr(84+4*t)}, v4, s[8:11], s{44+t} offen sc1')
publish(47); stamp(14)
a('s_setprio 0\ns_cmp_ge_u32 s3, 6\ns_cbranch_scc1 k4_h')
lin_loads(W1R[:12], 39); a.label('k4_h')
def gather3(base):
    for t in range(2):
        for s in range(1, 4):
            a(f's_add_u32 s44, s4, {s}\ns_and_b32 s44, s44, 3\ns_mul_i32 s44, s44, {S}\ns_add_u32 s44, s44, s38\ns_add_u32 s44, s44, {base + t*12288}')
            a(f'buffer_load_dwordx4 {vr(144 + 12*t + 4*(s-1))}, v4, s[8:11], s44 offen sc1')
    for t in range(2):
        madd(X[t], XR + 4*t)
        for s in range(3):
            a(f's_waitcnt vmcnt({5 - 3*t - s})'); madd(X[t], 144 + 12*t + 4*s)
mk_sel(84); mk_ar(92)
spoll([(48, 4, 46, 0)], 4, [(46, 4)] if '--vf3' in sys.argv else None); stamp(15)
gather3(P2)
for t in range(2): packx(XR + 4*t, X[t]); madd(X[t], XR + 4*t, True)
stamp(16)
def w1b():
    a('s_cmp_ge_u32 s3, 6\ns_cbranch_scc1 k4_i')
    lin_loads(W1R[12:], 39, 12); a.label('k4_i')
ln_tail(X, 144, w1b); stamp(17)
gemm(12, 2, W1R, 144, 68, False, HL, 12288, vm=lambda k: (22 - 2*k + 2*min(k, NL)) if k >= 6 else 63, post=lambda k: lin_loads(W1R[2*k:2*k+2], 65, 2*k) if k < NL else None)
a(f's_lshl_b32 s44, s3, 13\nv_add_u32 v11, s44, v4\nv_add_u32 v11, {EX}, v11')
for i in range(8): a(f'ds_read_b128 {vr(W1R[16+i])}, v11 offset:{1024*i}')
stamp(18)
ga = -2 * math.sqrt(2 / math.pi) * math.log2(math.e)
a(f'v_mov_b32 v11, {hex(f2u(ga * 0.044715))}\nv_mov_b32 v10, {hex(f2u(ga))}')
for t in range(2):
    e = [vr(68 + 4*(p*2+t) + r, 2) for p in range(2) for r in (0, 2)]
    T = 144 + 8*t
    tt = [vr(T + 2*k, 2) for k in range(4)]
    for y, x in zip(tt, e): a(f'v_pk_mul_f32 {y}, {x}, {x}')
    for y, x in zip(tt, e): a(f'v_pk_fma_f32 {y}, {y}, v[10:11], v[10:11] op_sel:[0,1,0] op_sel_hi:[1,1,0]')
    for y, x in zip(tt, e): a(f'v_pk_mul_f32 {y}, {y}, {x}')
    for k in range(8): a(f'v_exp_f32 v{T+k}, v{T+k}')
    for y, x in zip(tt, e): a(f'v_pk_add_f32 {y}, {y}, 1.0 op_sel_hi:[1,0]')
    for k in range(8): a(f'v_rcp_f32 v{T+k}, v{T+k}')
    for y, x in zip(tt, e): a(f'v_pk_mul_f32 {y}, {y}, {x}')
    for k in range(4): a(f'v_cvt_pk_bf16_f32 v{T+k}, v{T+2*k}, v{T+2*k+1}')
    a(f'ds_write_b128 v5, {vr(T)} offset:{GL + t*12288}')
a('s_waitcnt lgkmcnt(0)\ns_barrier'); stamp(19)
def w2post(n):
    if NL + n < 8: lin_loads(W1R[2*(NL+n):2*(NL+n)+2], 65, 2*(NL+n))
w2post(0)
gemm(12, 2, W1R, 144, 68, False, GL, 12288, vm=lambda n: 63 if n < 4 else 2*min(8, NL+n+1) - 2*(n-4) - 2, post=lambda n: w2post(n+1), order=[8,9,10,11,0,1,2,3,4,5,6,7])
stamp(20)
a(f's_add_u32 s46, s37, {F4}\ns_lshl_b32 s47, s4, 2\ns_add_u32 s47, s47, s46')
sdiv(64, 3, 3)
a('s_cmp_eq_u32 s64, s4\ns_cbranch_scc1 k5_own')
a(f's_add_u32 s44, s36, {P3}\ns_add_u32 s45, s44, 12288')
for t in range(2):
    packx(84 + 4*t, X[t]); a(f'buffer_store_dwordx4 {vr(84+4*t)}, v4, s[8:11], s{44+t} offen sc1')
publish(47); finish(21)
a.label('k5_own'); a.fence()
publish(47)
spoll([(48, 4, 46, 0)], 4); stamp(21)
gather3(P3)
for t in range(2):
    packx(84 + 4*t, X[t]); a(f'buffer_store_dwordx4 {vr(84+4*t)}, v0, s[24:27], s{33+t} offen')
l = L()
a(f's_cmp_lg_u32 s2, {NRP}\ns_cbranch_scc1 {l}\ns_cmp_lg_u32 s3, 0\ns_cbranch_scc1 {l}\ns_mov_b32 s47, {EPO}')
publish(47); a.label(l)
finish(22)
a.label('repack'); a.hist = []
a('s_mul_i32 s90, s2, 12\ns_add_u32 s90, s90, s3\ns_waitcnt lgkmcnt(0)')
a(f's_add_u32 s46, s8, {EPO}\ns_addc_u32 s47, s9, 0\ns_load_dword s91, s[46:47], 0')
a.label('rp0'); a('s_mov_b32 s4, s90')
if CPF:
    a('s_getpc_b64 s[64:65]'); a.label('pcref')
    a(f's_sub_u32 s64, s64, pcref-{NAME}\ns_subb_u32 s65, s65, 0\ns_lshr_b32 s76, s2, 3\ns_mul_i32 s77, s3, 7\ns_add_u32 s76, s76, s77\ns_lshl_b32 s76, s76, 6')
    for i in range(4): a(f's_min_u32 s77, s76, repack-{NAME}\ns_load_dword s{78+i}, s[64:65], s77\ns_add_u32 s76, s76, {84*64}')
a('s_cmp_ge_u32 s4, 288\ns_cbranch_scc1 rp2')
for which in (0, 1):
    if which == 0: a('s_cmp_ge_u32 s4, 144\ns_cbranch_scc1 rp1')
    else: a.label('rp1'); a('s_sub_u32 s4, s4, 144')
    ld, w = (2304, 3) if which == 0 else (3072, 4)
    srd(12, 54 if which == 0 else 58, 884736 if which == 0 else S)
    sdivmod(5, 6, 4, 12)
    a(f's_mul_i32 s44, s6, 11\ns_lshr_b32 s44, s44, 5\ns_mul_i32 s44, s44, 72\ns_lshl_b32 s45, s6, 3\ns_add_u32 s44, s44, s45\ns_mul_i32 s44, s44, {ld}\ns_mul_i32 s45, s5, {64*w}\ns_add_u32 s44, s44, s45')
    a(f'v_mul_u32_u24 v10, {24*ld}, v3\nv_mul_u32_u24 v11, {4*w}, v2\nv_add_u32 v10, v10, v11')
    for j in range(8): a(f'buffer_load_dwordx{w} {vr(16 + 4*j, w)}, v10, s[12:15], s44 offen\ns_add_u32 s44, s44, {ld}')
    a(f's_lshl_b32 s47, s5, 7\ns_lshl_b32 s45, s6, 2\ns_add_u32 s47, s47, s45\ns_add_u32 s47, s47, {FRQ if which == 0 else FR1}')
    if which == 0:
        a(f's_and_b32 s28, s5, 3\ns_mul_i32 s28, s28, 6\ns_lshr_b32 s29, s5, 2\ns_mul_i32 s44, s29, 3\ns_add_u32 s44, s44, s28\ns_mul_i32 s44, s44, 24576\ns_lshl_b32 s45, s6, 11\ns_add_u32 s44, s44, s45')
        a(f's_mul_i32 s30, s28, 12288\ns_lshl_b32 s45, s6, 10\ns_add_u32 s30, s30, s45\ns_add_u32 s30, s30, {24*24576}')
        a(f's_mov_b32 s33, 12288\ns_cmp_eq_u32 s29, 2\ns_cselect_b32 s44, s30, s44\ns_cselect_b32 s30, s33, 1024\ns_cselect_b32 s31, s33, 23552\ns_add_u32 s44, s44, {WQ}')
    else:
        a(f's_mul_i32 s44, s5, 98304\ns_lshl_b32 s45, s6, 11\ns_add_u32 s44, s44, s45\ns_add_u32 s44, s44, {W1P}\ns_mov_b32 s30, 1024\ns_mov_b32 s31, 23552')
    a('s_waitcnt vmcnt(0) lgkmcnt(0)\ns_add_u32 s43, s91, 1')
    perms(16, 4, w, 48)
    for f in range(2*w): a(f'buffer_store_dwordx4 {vr(48 + 4*f)}, v4, s[8:11], s44 offen sc1\ns_add_u32 s44, s44, s{30 + (f&1)}')
    publish(47); a('s_branch pf')
a.label('rp2'); a.hist = []
for which, tm in ((0, 0), (0, 1), (1, 0)):
    if which == 0 and not tm: a('s_cmp_ge_u32 s4, 360\ns_cbranch_scc1 rp5\ns_sub_u32 s4, s4, 288')
    elif tm: a.label('rp5'); a('s_cmp_ge_u32 s4, 432\ns_cbranch_scc1 rp3\ns_sub_u32 s4, s4, 360')
    else: a.label('rp3'); a('s_sub_u32 s4, s4, 432')
    srd(12, 52 if tm else 56 if which == 0 else 60, 294912 if which == 0 else S)
    sdivmod(6, 5, 4, 12)
    scol(28, 5)
    a(f'v_lshrrev_b32 v10, 2, v2\nv_mul_u32_u24 v10, 48, v10\nv_and_b32 v11, 3, v2\nv_lshl_add_u32 v10, v11, 2, v10\nv_mul_u32_u24 v11, {(24 if which == 0 else 32)*768}, v3\nv_add3_u32 v10, v10, v11, s28')
    for b in range(2):
        a(f's_lshl_b32 s29, s6, 1\ns_add_u32 s29, s29, {b}')
        if which == 0:
            sdivmod(30, 31, 29, 3)
            a(f's_mul_i32 s46, s30, 96\ns_lshl_b32 s45, s31, {3 if tm else 1}\ns_add_u32 s46, s46, s45\ns_mul_i32 s{32+b}, s30, 12\ns_add_u32 s{32+b}, s{32+b}, s5\ns_mul_i32 s{32+b}, s{32+b}, 6144\ns_lshl_b32 s45, s31, 11\ns_add_u32 s{32+b}, s{32+b}, s45\ns_add_u32 s{32+b}, s{32+b}, {WPT if tm else WP}')
        else:
            sdivmod(30, 31, 29, 12)
            a(f's_lshr_b32 s46, s29, 2\ns_lshl_b32 s46, s46, 7\ns_and_b32 s45, s29, 3\ns_lshl_b32 s45, s45, 1\ns_add_u32 s46, s46, s45\ns_mul_i32 s{32+b}, s30, 12\ns_add_u32 s{32+b}, s{32+b}, s5\ns_mul_i32 s{32+b}, s{32+b}, 24576\ns_lshl_b32 s45, s31, 11\ns_add_u32 s{32+b}, s{32+b}, s45\ns_add_u32 s{32+b}, s{32+b}, {W2P}')
        a('s_mul_i32 s46, s46, 768')
        for j in range(8):
            row = j if tm else (6 if which == 0 else 8)*(j&3) + (j>>2)
            a(f's_add_u32 s44, s46, {row*768}\nbuffer_load_dword v{16 + 8*b + j}, v10, s[12:15], s44 offen')
    a(f's_lshl_b32 s47, s5, 7\ns_lshl_b32 s45, s6, 2\ns_add_u32 s47, s47, s45\ns_add_u32 s47, s47, {FRT if tm else FRP if which == 0 else FR2}')
    a('s_waitcnt vmcnt(0) lgkmcnt(0)\ns_add_u32 s43, s91, 1')
    for b in range(2):
        perms(16 + 8*b, 1, 1, 32 + 8*b)
        for f in range(2): a(f'buffer_store_dwordx4 {vr(32 + 8*b + 4*f)}, v4, s[8:11], s{32+b} offen offset:{f*1024} sc1')
    publish(47); a('s_branch pf')
a.label('pf'); a.fence(); a('s_add_u32 s90, s90, 672\ns_cmp_lt_u32 s90, 720\ns_cbranch_scc1 rp0'); stamp(1)
a(f's_lshr_b32 s4, s2, 3\ns_mul_i32 s5, s3, 7\ns_add_u32 s4, s4, s5\nv_mul_u32_u24 v4, {TS}, v1\ns_mov_b32 s7, 48\ns_cmp_lt_u32 s4, 48\ns_cbranch_scc1 pf_l\ns_cmp_ge_u32 s4, 51\ns_cbranch_scc1 the_end')
a(f's_lshl_b32 s46, s4, 9\ns_add_u32 s46, s46, {FRT - 48*512}\ns_mov_b32 s28, 128\ns_mov_b32 s29, 5\ns_bfe_u32 s5, s2, 0x20001\ns_mul_i32 s5, s5, 3\ns_add_u32 s4, s4, s5\ns_add_u32 s4, s4, 96\ns_branch pf_go')
a.label('pf_l')
sdivmod(5, 6, 4, 6)
a(f's_cmp_ge_u32 s6, 3\ns_cselect_b32 s6, 4, 0\ns_add_u32 s46, s5, s6')
sdiv(5, 4, 3)
a(f's_cmp_ge_u32 s4, 24\ns_cselect_b32 s46, s5, s46\ns_lshl_b32 s46, s46, 7\ns_add_u32 s46, s46, {FRQ}\ns_mov_b32 s28, 0\ns_mov_b32 s29, 11\ns_cmp_lt_u32 s4, 36\ns_cbranch_scc1 pf_go')
a(f's_mul_i32 s5, s5, 3\ns_sub_u32 s5, s4, s5\ns_lshl_b32 s46, s5, 9\ns_add_u32 s46, s46, {FRP}\ns_mov_b32 s28, 128\ns_mov_b32 s29, 5\ns_cmp_lt_u32 s4, 48\ns_cbranch_scc1 pf_go')
a(f's_lshr_b32 s46, s4, 2\ns_lshl_b32 s46, s46, 7\ns_add_u32 s46, s46, {FR1 - 12*128}\ns_mov_b32 s28, 0\ns_mov_b32 s29, 11\ns_cmp_lt_u32 s4, 96\ns_cbranch_scc1 pf_go')
sdivmod(5, 6, 4, 12)
a(f's_lshl_b32 s46, s6, 7\ns_mul_i32 s5, s5, 24\ns_add_u32 s46, s46, s5\ns_add_u32 s46, s46, {FR2 - 8*24}\ns_mov_b32 s29, 5')
a.label('pf_go')
a('v_min_u32 v10, s29, v2\nv_lshl_add_u32 v10, v10, 2, s46\nv_mad_u32_u24 v10, v3, s28, v10')
poll(10, 0x400, 'the_end')
a(f's_mul_i32 s44, s4, 24576\ns_add_u32 s44, s44, {WQ}')
for i in range(24576 // (64*TS)): a(f'buffer_load_dword v{16+i}, v4, s[8:11], s44 offen sc1\ns_add_u32 s44, s44, {64*TS}\ns_waitcnt vmcnt(0)')
a.label('pf_n')
if THR:
    a(f's_cmp_lg_u32 s7, 48\ns_cbranch_scc1 pf_m\ns_min_u32 s46, s4, 71\ns_lshl_b32 s46, s46, 7\ns_add_u32 s46, s46, {F1}\nv_lshl_add_u32 v10, v2, 2, s46')
    poll(10, 0x40); a.label('pf_m')
a(f's_cmp_ge_u32 s3, {NW}\ns_cbranch_scc1 the_end\ns_add_u32 s4, s4, s7\ns_mov_b32 s7, {7*NW}\ns_cmp_lt_u32 s4, 144\ns_cbranch_scc1 pf_l\ns_waitcnt vmcnt(0)')
finish(2)
a.label('the_end'); a('s_endpgm')
if TLB:
    a.label('pf_t'); srd(24, 62, S)
    a(f'v_min_u32 v10, 8, v1\nv_lshlrev_b32 v10, 16, v10\ns_sub_u32 s44, s4, 48\ns_mul_i32 s44, s44, {S//2}\nbuffer_load_dword v16, v10, s[8:11], s44 offen sc1')
    a(f'v_min_u32 v11, 17, v1\nv_lshlrev_b32 v11, 16, v11\nbuffer_load_dword v17, v11, s[24:27], 0 offen sc1\nv_min_u32 v11, 3, v1\nv_lshlrev_b32 v11, 16, v11\ns_mov_b32 s44, {FLG + 64}\nbuffer_load_dword v18, v11, s[8:11], s44 offen sc1\ns_waitcnt vmcnt(0)\ns_endpgm')
hdr = open('standalone__video_videomae__vision.s.ref').read().split('; Override')[0]
out = hdr + f'; @launch grid=({NRP+192},1,1) block=(768,1,1) lds=163840\n.amdgcn_target "amdgcn-amd-amdhsa--gfx950"\n.text\n' + a.text() + f'''.section .rodata,"a"
.p2align 6
.amdhsa_kernel {NAME}
  .amdhsa_next_free_vgpr 168
  .amdhsa_next_free_sgpr 102
  .amdhsa_accum_offset 168
  .amdhsa_group_segment_fixed_size 0
  .amdhsa_kernarg_size 80
  .amdhsa_user_sgpr_count 2
  .amdhsa_user_sgpr_kernarg_segment_ptr 1
  .amdhsa_system_sgpr_workgroup_id_x 1
.end_amdhsa_kernel
'''
open(sys.argv[1], 'w').write(out)
```

```python
import sys, math, struct
from emit import Asm
S = 1179648
P1, KF, VF, P2, P3, WQ, WP, W1P, W2P, FLG = 0, 6*S, 7*S, 8*S, 13*S, 21*S, 21*S+884736, 22*S, 23*S, 25*S
F1, F2K, F2V, F3, F4, FRQ, FR1, FRP, FR2, EPO = [FLG + 128*x for x in (0, 72, 264, 360, 936, 1512, 1524, 1536, 1548, 1560)]
WSN = 26*S
def f2u(x): return struct.unpack('<I', struct.pack('<f', x))[0]
SC = (96 ** -0.5) * math.log2(math.e)
MF = 'v_mfma_f32_16x16x32_bf16'
def vr(a, n=4): return f'v[{a}:{a+n-1}]'
a = Asm()
DIAG = '--diag' in sys.argv
TLB = '--tlb' in sys.argv
CPF = '--cpf' in sys.argv
SL = int(sys.argv[sys.argv.index('--sl')+1]) if '--sl' in sys.argv else 3
SB = 0x100 if '--sb' in sys.argv else 0x10000
THR = '--thr' in sys.argv
NW = int(sys.argv[sys.argv.index('--nw')+1]) if '--nw' in sys.argv else 3
NL = int(sys.argv[sys.argv.index('--nl')+1]) if '--nl' in sys.argv else 4
GD = '--gd' in sys.argv
NPRE = int(sys.argv[sys.argv.index('--npre')+1]) if '--npre' in sys.argv else 2
TS = 64 if '--t64' in sys.argv else 128
SEL = 56 + 77
NRP = 56
lab = [0]
def L(): lab[0] += 1; return f'L{lab[0]}'
def stamp(i):
    if GD: a(f's_memrealtime s[66:67]\ns_waitcnt lgkmcnt(0)\ns_mov_b32 s{70+i}, s66')
    elif DIAG: a(f's_memtime s[66:67]\ns_waitcnt lgkmcnt(0)\ns_sub_u32 s{70+i}, s66, s98')
def finish(n):
    if DIAG:
        a('s_waitcnt vmcnt(0)'); stamp(n)
        l = L()
        a((f's_cmp_lg_u32 s3, {0 if n == 2 else 11}\ns_cbranch_scc1 {l}\ns_lshl_b32 s44, s2, 7\n' if GD else f's_cmp_lg_u32 s2, {SEL}\ns_cbranch_scc1 {l}\ns_lshl_b32 s44, s3, 7\n') + f's_add_u32 s44, s44, {FLG + 0x40000}\nv_mov_b32 v1, 0')
        for i in range(28): a(f'v_mov_b32 v2, s{70+i}\nbuffer_store_dword v2, v1, s[8:11], s44 offen offset:{4*i}')
        a.label(l)
    a('s_endpgm')
def srd(d, p, nb): a(f's_mov_b32 s{d}, s{p}\ns_mov_b32 s{d+1}, s{p+1}\ns_mov_b32 s{d+2}, {nb}\ns_mov_b32 s{d+3}, 0x20000')
def sdiv(dst, src, d): a(f's_mul_i32 s{dst}, s{src}, {65536 // d + 1}\ns_lshr_b32 s{dst}, s{dst}, 16')
def sdivmod(q, r, src, d): sdiv(q, src, d); a(f's_mul_i32 s{r}, s{q}, {d}\ns_sub_u32 s{r}, s{src}, s{r}')
def lin_loads(regs, sbase, first=0):
    for n, r in enumerate(regs):
        i = first + n
        if n == 0 or i % 4 == 0: a(f's_add_u32 s44, s{sbase}, {(i // 4) * 4096}')
        a(f'buffer_load_dwordx4 {vr(r)}, v4, s[8:11], s44 offen offset:{(i % 4) * 1024} sc1')
def greduce(v, t, op):
    a(f'v_mov_b32 v{t}, v{v}\nv_permlane32_swap_b32 v{v}, v{t}\n{op} v{v}, v{v}, v{t}')
    a(f'v_mov_b32 v{t}, v{v}\nv_permlane16_swap_b32 v{v}, v{t}\n{op} v{v}, v{v}, v{t}')
def greduce_n(vs, t, op):
    for sw in ('32', '16'):
        for k, v in enumerate(vs): a(f'v_mov_b32 v{t+k}, v{v}')
        for k, v in enumerate(vs): a(f'v_permlane{sw}_swap_b32 v{v}, v{t+k}')
        for k, v in enumerate(vs): a(f'{op} v{v}, v{v}, v{t+k}')
def xred_write(v, n, t, op, off):
    greduce_n(list(range(v, v+n)), t, op)
    a(f'ds_write_b{32*n} v{6 if n == 4 else 8}, {vr(v, n)} offset:{off}')
def xred_read(v, n, t, op, off):
    for k in range(3): a(f'ds_read_b{32*n} {vr(t + n*k, n)}, v{7 if n == 4 else 9} offset:{off + 4*n*k}')
    a('s_waitcnt lgkmcnt(0)')
    for k in range(n):
        if op == 'v_max_f32': a(f'v_max3_f32 v{v+k}, v{t+k}, v{t+n+k}, v{t+2*n+k}')
        else: a(f'v_add_f32 v{v+k}, v{t+k}, v{t+n+k}\nv_add_f32 v{v+k}, v{v+k}, v{t+2*n+k}')
    greduce_n(list(range(v, v+n)), t, op)
C = {}
def mk_ar(b):
    C['ar'] = b; a('v_lshrrev_b32 v11, 2, v2')
    for r in range(4): a(f'v_cmp_eq_u32 vcc, {r}, v11\nv_cndmask_b32_e64 v{b+r}, 0, 1.0, vcc')
def mk_sel(b):
    C['sel'] = b; a('v_lshlrev_b32 v11, 2, v3\nv_sub_u32 v11, v2, v11')
    for r in range(4): a(f'v_cmp_eq_u32 vcc, {r}, v11\nv_cndmask_b32_e64 v{b+4+r}, 0, 1.0, vcc\nv_lshrrev_b32 v{b+r}, 16, v{b+4+r}')
def gsum(d, v, n):
    for r in range(n): a(f'v_mfma_f32_16x16x4_f32 {vr(d)}, v{C["ar"]+r}, v{v+r}, {vr(d) if r else 0}')
def madd(X, r, first=False):
    for q in range(2): a(f'{MF} {vr(X[q])}, {vr(C["sel"]+4*q)}, {vr(r)}, {0 if first else vr(X[q])}')
def poll(va, bound=0x8000, fail=None):
    l, d = L(), L()
    a(f's_mov_b32 s45, {bound}'); a.label(l)
    a(f'buffer_load_dword v11, v{va}, s[8:11], 0 offen sc1\ns_waitcnt vmcnt(0)\nv_cmp_ne_u32 vcc, s43, v11\ns_nop 1\ns_cbranch_vccz {d}')
    a(f's_sub_u32 s45, s45, 1\ns_cbranch_scc1 {fail or d}\ns_sleep 1\ns_branch {l}'); a.label(d)
def spoll(lds, n, fb=None):
    l, d = L(), L()
    a(f's_mov_b32 s45, {SB}'); a.label(l)
    for dst, w, so, im in lds: a(f's_load_dwordx{w} s[{dst}:{dst+w-1}], s[8:9], s{so} offset:{im}' + ('' if fb else ' glc'))
    a('s_waitcnt lgkmcnt(0)')
    if n & 1: a(f's_mov_b32 s{48+n}, s43')
    for k in range(48, 48 + n, 2): a(f's_xor_b64 s[{k}:{k+1}], s[{k}:{k+1}], s[100:101]')
    for k in range(50, 48 + n, 2): a(f's_or_b64 s[48:49], s[48:49], s[{k}:{k+1}]')
    if fb:
        a(f's_cbranch_scc0 {d}'); flag_addr(10, fb); poll(10)
    else: a(f's_cbranch_scc0 {d}\ns_sub_u32 s45, s45, 1\ns_cbranch_scc1 {d}\ns_sleep {SL}\ns_branch {l}')
    a.label(d)
def flag_addr(va, groups):
    g0 = groups[0]
    a(f'v_min_u32 v{va}, {g0[1]-1}, v2\nv_lshl_add_u32 v{va}, v{va}, 2, s{g0[0]}')
    for k, (sb, n) in enumerate(groups[1:], 1):
        a(f'v_min_u32 v11, {n-1}, v2\nv_lshl_add_u32 v11, v11, 2, s{sb}\nv_cmp_eq_u32 vcc, {k}, v3\nv_cndmask_b32 v{va}, v{va}, v11, vcc')
def publish(sf):
    a(f'v_mov_b32 v11, s43\nv_mov_b32 v10, 0\ns_waitcnt vmcnt(0)\ns_mov_b64 exec, 1\nbuffer_store_dword v11, v10, s[8:11], s{sf} offen sc1\ns_mov_b64 exec, -1')
def unpack(dl, dh, r):
    for k in range(4): a(f'v_lshlrev_b32 v{dl+k}, 16, v{r+k}\nv_and_b32 v{dh+k}, s42, v{r+k}')
def addsrc(X, r, T):
    unpack(T, T+4, r)
    for q in range(2):
        for k in (0, 2): a(f'v_pk_add_f32 {vr(X[q]+k,2)}, {vr(X[q]+k,2)}, {vr(T+4*q+k,2)}')
def packx(d, X):
    for k in range(4): a(f'v_cvt_pk_bf16_f32 v{d+k}, v{X[0]+k}, v{X[1]+k}')
HL, ST, OL, QL, PL, EX = 0, 24576, 28672, 34816, 40960, 65536
MX, SM, GL, QK = ST, ST + 1536, PL, HL
XR = 12
def ln_tail(X, T, mid=None):
    s = T + 12
    for t in range(2):
        p = [vr(X[t][q]+k, 2) for q in range(2) for k in (0, 2)]
        a(f'v_pk_add_f32 {vr(T,2)}, {p[0]}, {p[1]}\nv_pk_mul_f32 {vr(T+2,2)}, {p[0]}, {p[0]}\nv_pk_add_f32 {vr(T,2)}, {vr(T,2)}, {p[2]}')
        a(f'v_pk_fma_f32 {vr(T+2,2)}, {p[1]}, {p[1]}, {vr(T+2,2)}\nv_pk_add_f32 {vr(T,2)}, {vr(T,2)}, {p[3]}')
        a(f'v_pk_fma_f32 {vr(T+2,2)}, {p[2]}, {p[2]}, {vr(T+2,2)}\nv_pk_fma_f32 {vr(T+2,2)}, {p[3]}, {p[3]}, {vr(T+2,2)}')
        a(f'v_add_f32 v{s+2*t}, v{T}, v{T+1}\nv_add_f32 v{s+2*t+1}, v{T+2}, v{T+3}')
    gsum(T+4, s, 4)
    a('v_and_b32 v10, 3, v2\nv_cmp_eq_u32 vcc, v10, v3\nv_cndmask_b32_e64 v10, 0, 1.0, vcc')
    a(f'ds_write_b32 v6, v{T+4} offset:{ST}\ns_waitcnt lgkmcnt(0)\ns_barrier')
    for k in range(3): a(f'ds_read_b128 {vr(T + 4*k)}, v7 offset:{ST + 16*k}')
    if mid: mid()
    a('s_waitcnt lgkmcnt(0)')
    for k in (1, 2):
        for j in (0, 2): a(f'v_pk_add_f32 {vr(T+j,2)}, {vr(T+j,2)}, {vr(T+4*k+j,2)}')
    a(f'v_pk_add_f32 {vr(T,2)}, {vr(T,2)}, {vr(T+2,2)}\nv_add_f32 v{T}, v{T}, v{T+1}\nv_mfma_f32_16x16x4_f32 {vr(s)}, v10, v{T}, 0')
    for t in range(2):
        m, q = s + 2*t, s + 2*t + 1
        a(f'v_mul_f32 v{m}, {hex(f2u(1/384))}, v{m}\nv_mul_f32 v{q}, {hex(f2u(1/384))}, v{q}\nv_fma_f32 v{q}, -v{m}, v{m}, v{q}')
        a(f'v_max_f32 v{q}, 0, v{q}\nv_add_f32 v{q}, {hex(f2u(1e-5))}, v{q}\nv_rsq_f32 v{q}, v{q}\nv_mul_f32 v{m}, -v{m}, v{q}')
    for t in range(2):
        for q in range(2):
            for k in (0, 2):
                p = vr(X[t][q]+k, 2)
                a(f'v_pk_fma_f32 {p}, {p}, {vr(s+2*t,2)}, {vr(s+2*t,2)} op_sel:[0,1,0] op_sel_hi:[1,1,0]')
        packx(T + 4*t, X[t])
        a(f'ds_write_b128 v5, {vr(T+4*t)} offset:{HL + t*12288}')
    a('s_waitcnt lgkmcnt(0)\ns_barrier')
def gemm(nk, nf, Wr, B, acc, swap, boff, tstride, vm=None, post=None, order=None):
    order = order or list(range(nk))
    def rd(k):
        for t in range(2): a(f'ds_read_b128 {vr(B + 4*((k%2)*2 + t))}, v4 offset:{boff + t*tstride + order[k]*1024}')
    rd(0)
    for k in range(nk):
        if k + 1 < nk: rd(k + 1)
        a(f's_waitcnt lgkmcnt({2 if k+1 < nk else 0})' + (f' vmcnt({vm(k)})' if vm else ''))
        for f in range(nf):
            for t in range(2):
                w = vr(Wr[order[k]*nf + f]); b = vr(B + 4*((k%2)*2 + t)); c = vr(acc + 4*(f*2 + t))
                x, y = (b, w) if swap else (w, b)
                a(f'{MF} {c}, {x}, {y}, {c if k else 0}')
        if post: post(k)
def perms(raw, stride, w, dst):
    for f in range(2*w):
        m, p = f >> 1, f & 1
        for d in range(4): a(f'v_perm_b32 v{dst + 4*f + d}, v{raw + (2*d+1)*stride + m}, v{raw + 2*d*stride + m}, s{40+p}')
def scol(dst, k):
    a(f's_mul_i32 s{dst}, s{k}, 11\ns_lshr_b32 s{dst}, s{dst}, 5\ns_mul_i32 s{dst}, s{dst}, 144\ns_lshl_b32 s45, s{k}, 4\ns_add_u32 s{dst}, s{dst}, s45')
NAME = 'standalone__video_videomae__vision_kernel'
a.raw(f'.globl {NAME}\n.p2align 8\n.type {NAME},@function\n{NAME}:')
if DIAG: a('s_memtime s[98:99]')
if GD: a('s_memrealtime s[96:97]')
a(f's_cmp_ge_u32 s2, {NRP+192}\ns_cbranch_scc1 the_end')
a('s_load_dwordx16 s[48:63], s[0:1], 0\ns_load_dwordx2 s[8:9], s[0:1], 72')
a('v_lshrrev_b32 v5, 6, v0\nv_and_b32 v1, 63, v0\nv_readfirstlane_b32 s3, v5\nv_and_b32 v2, 15, v0\nv_bfe_u32 v3, v0, 4, 2\nv_lshlrev_b32 v4, 4, v1')
a(f's_mov_b32 s10, {WSN}\ns_mov_b32 s11, 0x20000\ns_mov_b32 s40, 0x05040100\ns_mov_b32 s41, 0x07060302\ns_mov_b32 s42, 0xffff0000')
a(f's_cmp_lt_u32 s2, {NRP}\ns_cbranch_scc1 repack')
a(f's_sub_u32 s46, s2, {NRP}\ns_and_b32 s47, s46, 7\ns_lshr_b32 s46, s46, 3\ns_and_b32 s4, s46, 3\ns_lshr_b32 s5, s47, 1\ns_and_b32 s44, s47, 1')
a('s_mul_i32 s6, s44, 6\ns_lshr_b32 s45, s46, 2\ns_add_u32 s6, s6, s45\ns_lshl_b32 s7, s5, 2\ns_add_u32 s7, s7, s4')
a('s_mov_b32 s28, s5\ns_lshl_b32 s29, s46, 1\ns_add_u32 s29, s29, s44\ns_mul_i32 s30, s5, 12\ns_add_u32 s30, s30, s6\ns_lshl_b32 s31, s30, 1')
scol(32, 3)
a('v_and_b32 v10, 3, v2\nv_mul_u32_u24 v10, 384, v10\nv_lshrrev_b32 v11, 2, v2\ns_lshl_b32 s44, s29, 3\nv_add3_u32 v10, v10, v11, s44\nv_mul_u32_u24 v10, 768, v10')
a('v_mul_u32_u24 v11, 48, v3\nv_add_u32 v10, v10, v11\nv_mul_u32_u24 v9, 768, v2\nv_add_u32 v9, v9, v11')
a('s_mul_i32 s33, s31, 12288\ns_add_u32 s33, s33, s32\ns_add_u32 s34, s33, 12288')
a('s_waitcnt lgkmcnt(0)')
a(f's_add_u32 s46, s8, {EPO}\ns_addc_u32 s47, s9, 0\ns_load_dword s43, s[46:47], 0')
srd(12, 48, S); srd(16, 50, 884736); srd(20, 52, 294912); srd(24, 62, S)
stamp(0)
a(f'buffer_load_dwordx4 {vr(20)}, v10, s[12:15], s32 offen\nbuffer_load_dwordx4 {vr(24)}, v10, s[12:15], s32 offen offset:3072')
def common_addrs():
    a('v_mov_b32 v0, v9\ns_lshl_b32 s44, s3, 10\nv_add_u32 v5, s44, v4')
    a('v_mul_u32_u24 v7, 192, v2\ns_lshl_b32 s44, s3, 4\nv_add_u32 v6, s44, v7\nv_lshrrev_b32 v8, 1, v6\nv_mad_u32_u24 v7, v3, 48, v7\nv_lshrrev_b32 v9, 1, v7\ns_lshl_b32 s44, s3, 2\nv_add_u32 v6, s44, v7')
def ln1(after, mid):
    X = [(28, 32), (36, 40)]
    mk_ar(60)
    for t in range(2):
        if t == 0: stamp(23)
        a(f's_waitcnt vmcnt({after + (1 - t if after > 0 else 0)})'); unpack(X[t][0], X[t][1], 20 + 4*t)
    stamp(24)
    ln_tail(X, 44, mid)
    a('s_add_u32 s43, s43, 1\ns_mov_b32 s100, s43\ns_mov_b32 s101, s43')
a('s_lshr_b32 s47, s29, 3\ns_sub_u32 s44, s3, 6\ns_cmp_eq_u32 s44, 3\ns_cbranch_scc1 k1_tx\ns_cmp_ge_u32 s44, 3\ns_cbranch_scc1 k1_nt')
a('s_lshr_b32 s45, s29, 1\ns_mul_i32 s45, s45, 3\ns_add_u32 s44, s44, s45\ns_lshl_b32 s44, s44, 6\nv_add_u32 v11, s44, v1\ns_cmp_ge_u32 s44, 3456\ns_cbranch_scc1 k1_tp')
a('v_mul_u32_u24 v10, 21846, v11\nv_lshrrev_b32 v10, 16, v10\nv_mul_u32_u24 v10, 576, v10\nv_lshl_add_u32 v10, v11, 6, v10\ns_mul_i32 s44, s28, 192\nbuffer_load_dword v28, v10, s[16:19], s44 offen\ns_branch k1_nt')
a.label('k1_tx')
a('v_min_u32 v10, 47, v1\nv_lshlrev_b32 v10, 7, v10\ns_lshl_b32 s44, s31, 1\ns_add_u32 s44, s44, s4\ns_mul_i32 s44, s44, 6144\nbuffer_load_dword v28, v10, s[12:15], s44 offen\ns_branch k1_nt')
a.label('k1_tp')
a('v_lshlrev_b32 v10, 6, v11\nv_subrev_u32 v10, 221184, v10\ns_mul_i32 s44, s28, 73728\nbuffer_load_dword v28, v10, s[20:23], s44 offen')
a.label('k1_nt')
a('s_mov_b32 s69, s47\ns_barrier\ns_cmp_ge_u32 s3, 6\ns_cbranch_scc1 k1_proj')
sdivmod(35, 36, 3, 3)
RING, FR, B, ACC = 104, 72, 96, 20
a('v_mul_u32_u24 v68, 55296, v3\nv_mul_u32_u24 v69, 12, v2\ns_mul_i32 s44, s36, 768\ns_mul_i32 s45, s28, 192\ns_add_u32 s44, s44, s45\ns_mul_i32 s45, s35, 442368\ns_add_u32 s44, s44, s45\nv_add3_u32 v68, v68, v69, s44')
for q in range(1, 4): a(f'v_add_u32 v{68+q}, {q*4608}, v68')
def wl(k):
    a(f's_mov_b32 s44, {(96*(k//3) + 8*(k%3))*2304}')
    for j in range(8): a(f'buffer_load_dwordx3 {vr(RING + (k%2)*32 + 4*j, 3)}, v{68 + j//2}, s[16:19], s44 offen offset:{(j&1)*2304}')
for k in range(NPRE): wl(k)
def mid1():
    a('s_waitcnt vmcnt(8)'); perms(RING, 4, 3, FR); wl(2)
common_addrs(); ln1(8*NPRE, mid1); stamp(1)
for k in range(NPRE, 2): wl(k)
a('s_mul_i32 s44, s35, 18432\nv_add_u32 v10, s44, v4\ns_mul_i32 s44, s35, 6144\ns_sub_u32 s44, 12288, s44\nv_add_u32 v11, s44, v4')
W2K = [72 + 4*i for i in range(24)]
def rpoll(): spoll([(48, 8, 38, 0), (56, 4, 38, 32)], 12, [(38, 12)])
def rpoll2():
    a(f's_lshl_b32 s46, s3, 7\ns_add_u32 s47, s46, {FR2}\ns_mul_i32 s44, s4, 24\ns_add_u32 s47, s47, s44\ns_add_u32 s46, s46, {FRP}')
    a(f's_mul_i32 s39, s4, 12\ns_add_u32 s39, s39, s3\ns_lshr_b32 s64, s39, 2\ns_lshl_b32 s64, s64, 7\ns_add_u32 s64, s64, {FR1}')
    spoll([(48, 4, 46, 0), (52, 2, 46, 16), (54, 2, 47, 16), (56, 4, 47, 0)], 12, [(46, 6), (47, 6)])
    spoll([(48, 8, 64, 0), (56, 4, 64, 32)], 12, [(64, 12)])
def k2pre(n=24):
    stamp(3)
    a(f's_lshl_b32 s38, s35, 2\ns_add_u32 s38, s38, s4\ns_lshl_b32 s38, s38, 7\ns_add_u32 s38, s38, {FRQ}')
    rpoll()
    a(f's_mul_i32 s46, s4, 6\ns_add_u32 s46, s46, s3\ns_mul_i32 s46, s46, 24576\ns_add_u32 s46, s46, {WQ}')
    if n == 24: a('s_barrier')
    lin_loads(W2K[:n], 46)
for role in ('qk', 'v'):
    if role == 'qk': a('s_cmp_eq_u32 s36, 2\ns_cbranch_scc1 k1_v')
    else: a.label('k1_v')
    for k in range(6):
        for t in range(2): a(f'ds_read_b128 {vr(B + 4*t)}, v{10+t} offset:{HL + k*1024}')
        if k:
            a(f's_waitcnt vmcnt({8 if k < 5 else 0})')
            perms(RING + (k%2)*32, 4, 3, FR)
            if k + 2 < 6: wl(k + 2)
        a('s_waitcnt lgkmcnt(0)')
        for f in range(6):
            for t in range(2):
                w = vr(FR + 4*f); b = vr(B + 4*t); c = vr(ACC + 4*(f*2 + t))
                x, y = (b, w) if role == 'v' else (w, b)
                a(f'{MF} {c}, {x}, {y}, {c if k else 0}')
    stamp(2)
    a(f's_lshl_b32 s44, s36, 1\ns_add_u32 s44, s44, s35\ns_mul_i32 s46, s44, 3072\ns_mul_i32 s45, s44, 6144\ns_add_u32 s45, s45, {EX}\nv_add_u32 v10, s45, v4\ns_xor_b32 s44, s44, 1\ns_mul_i32 s45, s44, 6144\ns_add_u32 s45, s45, {EX}\nv_add_u32 v11, s45, v4')
    for f in range(6): a(f'ds_write_b128 v11, {vr(ACC + 8*f + 4)} offset:{f*1024}')
    a('s_waitcnt lgkmcnt(0)\ns_barrier')
    for f in range(6): a(f'ds_read_b128 {vr(ACC + 8*f + 4)}, v10 offset:{f*1024}')
    a('v_add_u32 v10, s46, v4')
    for f in range(6):
        a(f's_waitcnt lgkmcnt({5-f})')
        for k in (0, 2): a(f'v_pk_add_f32 {vr(ACC+8*f+k,2)}, {vr(ACC+8*f+k,2)}, {vr(ACC+8*f+4+k,2)}')
    if role == 'qk':
        for r in range(4):
            for f in (0, 2, 4): a(f'v_cvt_pk_bf16_f32 v{FR + 3*r + f//2}, v{ACC + 8*f + r}, v{ACC + 8*(f+1) + r}')
        for i in range(3): a(f'ds_write_b128 v10, {vr(FR + 4*i)} offset:{QK + i*1024}')
        a('s_waitcnt lgkmcnt(0)\ns_barrier')
        k2pre(12)
        a('s_barrier\ns_barrier'); lin_loads(W2K[12:], 46, 12); a('s_branch k2')
    else:
        for f in range(6):
            c = ACC + 8*f
            a(f'v_cvt_pk_bf16_f32 v{FR+4*f}, v{c}, v{c+1}\nv_cvt_pk_bf16_f32 v{FR+4*f+1}, v{c+2}, v{c+3}\nv_mov_b32 v{FR+4*f+2}, 0\nv_mov_b32 v{FR+4*f+3}, 0')
        a(f'v_lshrrev_b32 v11, 2, v2\nv_cmp_eq_u32 vcc, v11, v3\ns_mov_b32 s44, {hex(f2u(SC))}\nv_mov_b32 v102, 0\nv_mov_b32 v103, 0\ns_mul_i32 s46, s35, 3072\nv_add_u32 v10, s46, v4\ns_barrier')
        for i in range(3): a(f'ds_read_b128 {vr(RING + 8*i)}, v10 offset:{QK + i*1024}\nds_read_b128 {vr(RING + 8*i + 4)}, v10 offset:{QK + 6144 + i*1024}')
        c, m = 96, 68
        for i in range(3): a(f's_waitcnt lgkmcnt({4-2*i})\n{MF} {vr(c)}, {vr(RING + 8*i + 4)}, {vr(RING + 8*i)}, {vr(c) if i else 0}')
        a(f'v_max3_f32 v{m}, v{c}, v{c+1}, v{c+2}\nv_max_f32 v{m}, v{m}, v{c+3}\nv_mul_f32 v{m}, s44, v{m}')
        for r in range(4): a(f'v_fma_f32 v{c+r}, v{c+r}, s44, -v{m}')
        for r in range(4): a(f'v_exp_f32 v{c+r}, v{c+r}')
        a(f'v_add_f32 v{m}, v{c}, v{c+1}\nv_add_f32 v{m+1}, v{c+2}, v{c+3}\nv_add_f32 v{m}, v{m}, v{m+1}\nv_rcp_f32 v{m}, v{m}')
        for r in range(4): a(f'v_mul_f32 v{c+r}, v{c+r}, v{m}')
        a(f'v_cvt_pk_bf16_f32 v100, v{c}, v{c+1}\nv_cvt_pk_bf16_f32 v101, v{c+2}, v{c+3}\nv_cndmask_b32 v100, 0, v100, vcc\nv_cndmask_b32 v101, 0, v101, vcc')
        for f in range(6): a(f'{MF} {vr(ACC + 4*f)}, {vr(FR + 4*f)}, {vr(100)}, 0')
        for r in range(4):
            for f in (0, 2, 4): a(f'v_cvt_pk_bf16_f32 v{RING + 3*r + f//2}, v{ACC + 4*f + r}, v{ACC + 4*(f+1) + r}')
        for i in range(3): a(f'ds_write_b128 v10, {vr(RING + 4*i)} offset:{OL + i*1024}')
        a('s_waitcnt lgkmcnt(0)\ns_barrier')
k2pre()
a('s_branch k2')
a.label('k1_proj'); a.hist = []
a('s_sub_u32 s35, s3, 6\ns_lshl_b32 s44, s35, 1\nv_bfe_u32 v68, v2, 1, 1\nv_add_u32 v68, s44, v68\nv_mul_u32_u24 v69, 11, v68\nv_lshrrev_b32 v69, 5, v69\nv_mul_u32_u24 v69, 144, v69')
a('v_lshl_add_u32 v68, v68, 4, v69\nv_lshrrev_b32 v69, 2, v2\nv_mul_u32_u24 v69, 48, v69\nv_and_b32 v70, 1, v2\nv_lshlrev_b32 v70, 3, v70\nv_add3_u32 v68, v68, v69, v70')
a('v_mul_u32_u24 v69, 18432, v3\nv_add_u32 v68, v68, v69\nv_add_u32 v69, 3072, v68\ns_mul_i32 s46, s28, 73728')
RAW, FR = 120, 72
def pl(i):
    a(f's_add_u32 s44, s46, {i*6144}')
    for j in range(8): a(f'buffer_load_dwordx2 {vr(RAW + 16*i + 2*j, 2)}, v{68 + j//4}, s[20:23], s44 offen offset:{(j&3)*768}')
common_addrs(); ln1(0, lambda: pl(0)); stamp(1)
pl(1); a('s_barrier\ns_setprio 2'); pl(2); a('s_barrier')
a('v_and_b32 v70, 3, v2\nv_lshlrev_b32 v70, 8, v70\nv_lshrrev_b32 v71, 2, v2\nv_lshl_add_u32 v71, v3, 2, v71\nv_lshl_add_u32 v70, v71, 4, v70')
a(f's_mul_i32 s36, s29, 24576\ns_mul_i32 s44, s28, {S}\ns_add_u32 s36, s36, s44\ns_lshl_b32 s44, s35, 12\ns_add_u32 s36, s36, s44')
a(f's_lshr_b32 s37, s29, 2\ns_mul_i32 s37, s37, 6\ns_add_u32 s37, s37, s35\ns_lshl_b32 s37, s37, 7\ns_and_b32 s44, s29, 3\ns_lshl_b32 s44, s44, 4\ns_add_u32 s37, s37, s44\ns_lshl_b32 s44, s28, 2\ns_add_u32 s37, s37, s44\ns_add_u32 s37, s37, {F1}')
for i in range(2):
    a(f's_waitcnt vmcnt({8*(2-i)})'); perms(RAW + 16*i, 2, 2, FR + 16*i)
a(f's_lshl_b32 s38, s4, 7\ns_add_u32 s38, s38, {FRQ + 8*128}')
rpoll(); a('s_waitcnt vmcnt(0)'); perms(RAW + 32, 2, 2, FR + 32)
stamp(2)
W2V = [120 + 4*i for i in range(12)]
a('s_barrier'); stamp(3)
gemm(3, 4, [FR + 4*i for i in range(12)], 52, 20, False, OL, 3072)
for t in range(2):
    for rho in range(2):
        d = 52 + 4*(t*2+rho); A_ = lambda f, r: f'v{20 + 4*(f*2 + t) + r}'
        a(f'v_cvt_pk_bf16_f32 v{d}, {A_(0,2*rho)}, {A_(1,2*rho)}\nv_cvt_pk_bf16_f32 v{d+1}, {A_(2,2*rho)}, {A_(3,2*rho)}')
        a(f'v_cvt_pk_bf16_f32 v{d+2}, {A_(0,2*rho+1)}, {A_(1,2*rho+1)}\nv_cvt_pk_bf16_f32 v{d+3}, {A_(2,2*rho+1)}, {A_(3,2*rho+1)}')
        a(f'buffer_store_dwordx4 {vr(d)}, v70, s[8:11], s36 offen offset:{rho*2048 + t*1024} sc1')
a('s_barrier')
publish(37); stamp(25)
a('s_setprio 0')
a(f's_mul_i32 s46, s4, 6\ns_add_u32 s46, s46, s35\ns_mul_i32 s46, s46, 12288\ns_add_u32 s46, s46, {WQ + 24*24576}')
lin_loads(W2V, 46)
a.label('k2'); a.fence(); stamp(4)
a(f'buffer_load_dwordx4 {vr(XR)}, v0, s[12:15], s33 offen\nbuffer_load_dwordx4 {vr(XR+4)}, v0, s[12:15], s34 offen')
rpoll2()
a(f's_mul_i32 s65, s39, 24576\ns_add_u32 s65, s65, {W2P}\ns_lshl_b32 s64, s3, 13\ns_add_u32 s64, s64, {EX}')
def dma(q):
    a(f's_add_u32 m0, s64, {4096*q}\ns_add_u32 s44, s65, {16384 + 4096*q}')
    for i in range(4): a(f'buffer_load_dwordx4 v4, s[8:11], s44 offen offset:{1024*i} sc1 lds')
a(f's_mul_i32 s46, s6, 6\ns_lshr_b32 s44, s3, 1\ns_add_u32 s46, s46, s44\ns_lshl_b32 s46, s46, 7\ns_add_u32 s46, s46, {F1}')
a('s_mul_i32 s38, s31, 12288\ns_lshl_b32 s44, s3, 10\ns_add_u32 s38, s38, s44')
mk_sel(60); mk_ar(68)
a('v_lshrrev_b32 v52, 3, v2\nv_mul_u32_u24 v52, 24576, v52\nv_bfe_u32 v53, v2, 2, 1\nv_lshl_add_u32 v52, v53, 10, v52\nv_lshl_add_u32 v52, v3, 6, v52\nv_and_b32 v53, 3, v2\nv_lshl_add_u32 v52, v53, 4, v52')
a('s_mul_i32 s47, s6, 98304\ns_lshl_b32 s44, s3, 11\ns_add_u32 s47, s47, s44\ns_lshl_b32 s44, s5, 8\ns_add_u32 s47, s47, s44')
spoll([(48, 16, 46, 0)], 16); stamp(5)
for t in range(2):
    for s in range(4): a(f's_add_u32 s44, s47, {P1 + s*S + t*49152}\nbuffer_load_dwordx4 {vr(20 + 16*t + 4*s)}, v52, s[8:11], s44 offen sc1')
X = [(52, 56), (20, 24)]
for t in range(2):
    if t == 0: a('s_waitcnt vmcnt(8)')
    madd(X[t], XR + 4*t, True)
    for s in range(4):
        a(f's_waitcnt vmcnt({7 - 4*t - s})'); madd(X[t], 20 + 16*t + 4*s)
for t in range(2): packx(XR + 4*t, X[t]); madd(X[t], XR + 4*t, True)
stamp(6)
ln_tail(X, 28, lambda: dma(0)); stamp(7)
dma(1)
a('s_cmp_ge_u32 s3, 6\ns_cbranch_scc1 k2_v')
gemm(12, 2, W2K, 20, 36, False, HL, 12288); stamp(8)
for t in range(2):
    for p in range(2):
        c = 36 + 4*(p*2+t); a(f'v_cvt_pk_bf16_f32 v{52+4*t+2*p}, v{c}, v{c+1}\nv_cvt_pk_bf16_f32 v{53+4*t+2*p}, v{c+2}, v{c+3}')
a('s_cmp_ge_u32 s3, 3\ns_cbranch_scc1 k2_k')
for t in range(2): a(f'ds_write_b128 v5, {vr(52+4*t)} offset:{QL + t*3072}')
a('s_branch k3'); a.label('k2_k')
a(f's_mul_i32 s46, s7, 12\ns_add_u32 s46, s46, s6\ns_mul_i32 s44, s46, 6144\ns_lshl_b32 s45, s36, 10\ns_add_u32 s44, s44, s45\ns_add_u32 s44, s44, {KF}')
for t in range(2): a(f'buffer_store_dwordx4 {vr(52+4*t)}, v4, s[8:11], s44 offen offset:{t*3072} sc1')
a(f's_lshl_b32 s46, s46, 7\ns_lshl_b32 s45, s36, 2\ns_add_u32 s46, s46, s45\ns_add_u32 s46, s46, {F2K}')
publish(46)
a('s_branch k3'); a.label('k2_v'); a.hist = []
gemm(12, 1, W2V, 20, 36, True, HL, 12288); stamp(8)
for t in range(2):
    c = 36 + 4*t; a(f'v_cvt_pk_bf16_f32 v{52+2*t}, v{c}, v{c+1}\nv_cvt_pk_bf16_f32 v{53+2*t}, v{c+2}, v{c+3}')
a(f's_mul_i32 s46, s7, 6\ns_add_u32 s46, s46, s35\ns_mul_i32 s44, s46, 12\ns_add_u32 s44, s44, s6\ns_lshl_b32 s44, s44, 10\ns_add_u32 s44, s44, {VF}')
a(f'buffer_store_dwordx4 {vr(52)}, v4, s[8:11], s44 offen sc1')
a(f's_lshl_b32 s46, s46, 7\ns_lshl_b32 s45, s6, 2\ns_add_u32 s46, s46, s45\ns_add_u32 s46, s46, {F2V}')
publish(46)
a.label('k3'); a.fence(); stamp(9)
a(f's_mul_i32 s46, s39, 6144\ns_add_u32 s46, s46, {WP}')
WPR = [144 + 4*i for i in range(6)]
lin_loads(WPR, 46)
a(f's_sub_u32 s39, s65, {W2P - W1P}')
W1R = [96 + 4*i for i in range(12)] + [20 + 4*i for i in range(12)]
a('s_lshl_b32 s35, s69, 1\ns_add_u32 s35, s35, s3\ns_sub_u32 s44, s35, 12\ns_cmp_ge_u32 s35, 12\ns_cselect_b32 s35, s44, s35')
a('s_min_u32 s44, s3, 5\ns_add_u32 s69, s69, s44\ns_sub_u32 s44, s69, 6\ns_cmp_ge_u32 s69, 6\ns_cselect_b32 s69, s44, s69')
a(f's_mul_i32 s46, s7, 12\ns_add_u32 s46, s46, s35\ns_mul_i32 s36, s46, 6144\ns_add_u32 s36, s36, {KF}\ns_lshl_b32 s46, s46, 7\ns_add_u32 s46, s46, {F2K}')
a(f's_mul_i32 s47, s7, 6\ns_add_u32 s47, s47, s69\ns_mul_i32 s37, s47, 12288\ns_add_u32 s37, s37, {VF}\ns_lshl_b32 s47, s47, 7\ns_add_u32 s47, s47, {F2V}')
a('s_waitcnt lgkmcnt(0)\ns_barrier')
K, Q, SA, T, V = 20, 44, 68, 84, 96
for i in range(6): a(f'ds_read_b128 {vr(Q + 4*i)}, v4 offset:{QL + i*1024}')
spoll([(48, 4, 46, 0)], 3); stamp(10)
lin_loads([K + 4*i for i in range(6)], 36)
a(f's_mov_b32 s64, {hex(f2u(SC))}\ns_waitcnt lgkmcnt(0)')
def smm(ex):
    for tau in range(2):
        a(f's_waitcnt vmcnt({ex + 3*(1-tau)})')
        for i in range(3):
            for u in range(2):
                c = vr(SA + 4*(u*2+tau)); a(f'{MF} {c}, {vr(K + 4*(tau*3+i))}, {vr(Q + 4*(u*3+i))}, {c if i else 0}')
a('s_cmp_lt_u32 s3, 6\ns_cbranch_scc1 k3_v')
smm(0); a('s_branch k3_b'); a.label('k3_v')
spoll([(48, 8, 47, 0), (56, 4, 47, 32)], 12, [(47, 12)])
lin_loads([V + 4*i for i in range(12)], 37)
smm(12); a.label('k3_b'); a('s_nop 7'); stamp(11)
M = 92
for u in range(2):
    e = SA + 8*u
    a(f'v_max3_f32 v{M+u}, v{e}, v{e+1}, v{e+2}\nv_max3_f32 v{M+u}, v{M+u}, v{e+3}, v{e+4}\nv_max3_f32 v{M+u}, v{M+u}, v{e+5}, v{e+6}\nv_max_f32 v{M+u}, v{M+u}, v{e+7}')
xred_write(M, 2, T, 'v_max_f32', MX)
a('s_lshl_b32 s44, s35, 11\nv_add_u32 v10, s44, v4\ns_waitcnt lgkmcnt(0)\ns_barrier')
xred_read(M, 2, T, 'v_max_f32', MX)
for u in range(2): a(f'v_mul_f32 v{M+u}, s64, v{M+u}')
for u in range(2):
    e = SA + 8*u
    for k in range(8): a(f'v_fma_f32 v{e+k}, v{e+k}, s64, -v{M+u}')
    for k in range(8): a(f'v_exp_f32 v{e+k}, v{e+k}')
    for k in range(4): a(f'v_cvt_pk_bf16_f32 v{T+4*u+k}, v{e+2*k}, v{e+2*k+1}')
    a(f'ds_write_b128 v10, {vr(T+4*u)} offset:{PL + u*1024}')
    a(f'v_pk_add_f32 {vr(e,2)}, {vr(e,2)}, {vr(e+2,2)}\nv_pk_add_f32 {vr(e+4,2)}, {vr(e+4,2)}, {vr(e+6,2)}\nv_pk_add_f32 {vr(e,2)}, {vr(e,2)}, {vr(e+4,2)}\nv_add_f32 v{M+2+u}, v{e}, v{e+1}')
xred_write(M+2, 2, SA, 'v_add_f32', SM)
a('s_cmp_lt_u32 s3, 6\ns_cbranch_scc1 k3_c')
lin_loads(W1R[:8], 39); a.label('k3_c')
a('s_waitcnt lgkmcnt(0)\ns_barrier'); stamp(12)
W1R = [96 + 4*i for i in range(12)] + [20 + 4*i for i in range(12)]
a('s_cmp_lt_u32 s3, 6\ns_cbranch_scc1 k3_pv')
lin_loads(W1R[8:], 39, 8)
a('s_branch k3_o'); a.label('k3_pv')
PB = [20 + 4*(i % 12) for i in range(24)]
OA = 68
for i in range(12): a(f'ds_read_b128 {vr(PB[i])}, v4 offset:{PL + i*1024}')
for kb in range(12):
    nrd = min(24, 12 + 2*max(0, kb - 1))
    a(f's_waitcnt vmcnt({11 - kb}) lgkmcnt({nrd - 2*kb - 2})')
    for u in range(2):
        c = vr(OA + 4*u); a(f'{MF} {c}, {vr(V + 4*kb)}, {vr(PB[2*kb+u])}, {c if kb else 0}')
    if kb >= 1:
        for i in range(nrd, min(24, nrd + 2)): a(f'ds_read_b128 {vr(PB[i])}, v4 offset:{PL + i*1024}')
a('s_lshr_b32 s44, s69, 1\ns_lshl_b32 s44, s44, 10\ns_and_b32 s45, s69, 1\ns_lshl_b32 s45, s45, 3\ns_add_u32 s44, s44, s45\nv_add_u32 v10, s44, v4')
xred_read(M, 2, T, 'v_add_f32', SM)
for u in range(2): a(f'v_rcp_f32 v{M+u}, v{M+u}')
for u in range(2):
    c = OA + 4*u
    for r in range(4): a(f'v_mul_f32 v{c+r}, v{c+r}, v{M+u}')
    a(f'v_cvt_pk_bf16_f32 v{c}, v{c}, v{c+1}\nv_cvt_pk_bf16_f32 v{c+1}, v{c+2}, v{c+3}\nds_write_b64 v10, {vr(c,2)} offset:{OL + u*3072}')
a('s_waitcnt lgkmcnt(0)'); a.label('k3_o')
a('s_barrier'); stamp(13)
a('s_setprio 2')
def rdo(n): a(f'ds_read_b128 {vr(84 + 4*(n%3))}, v4 offset:{OL + (n&1)*3072 + (n>>1)*1024}')
for n in range(3): rdo(n)
for n in range(6):
    a(f's_waitcnt lgkmcnt({min(2, 5-n)})')
    for f in range(2):
        c = vr(68 + 4*(f*2 + (n&1))); a(f'{MF} {c}, {vr(WPR[(n>>1)*2+f])}, {vr(84 + 4*(n%3))}, {c if n > 1 else 0}')
    if n + 3 < 6: rdo(n + 3)
X = [(68, 76), (72, 80)]
a(f's_mul_i32 s44, s4, {S}\ns_add_u32 s36, s38, s44\ns_add_u32 s44, s36, {P2}\ns_add_u32 s45, s44, 12288')
a(f's_mul_i32 s37, s30, 12\ns_add_u32 s37, s37, s3\ns_lshl_b32 s37, s37, 7\ns_add_u32 s46, s37, {F3}\ns_lshl_b32 s47, s4, 2\ns_add_u32 s47, s47, s46')
for t in range(2):
    packx(84 + 4*t, X[t]); a(f'buffer_store_dwordx4 {vr(84+4*t)}, v4, s[8:11], s{44+t} offen sc1')
publish(47); stamp(14)
a('s_setprio 0\ns_cmp_ge_u32 s3, 6\ns_cbranch_scc1 k4_h')
lin_loads(W1R[:12], 39); a.label('k4_h')
def gather3(base):
    for t in range(2):
        for s in range(1, 4):
            a(f's_add_u32 s44, s4, {s}\ns_and_b32 s44, s44, 3\ns_mul_i32 s44, s44, {S}\ns_add_u32 s44, s44, s38\ns_add_u32 s44, s44, {base + t*12288}')
            a(f'buffer_load_dwordx4 {vr(144 + 12*t + 4*(s-1))}, v4, s[8:11], s44 offen sc1')
    for t in range(2):
        madd(X[t], XR + 4*t)
        for s in range(3):
            a(f's_waitcnt vmcnt({5 - 3*t - s})'); madd(X[t], 144 + 12*t + 4*s)
mk_sel(84); mk_ar(92)
spoll([(48, 4, 46, 0)], 4); stamp(15)
gather3(P2)
for t in range(2): packx(XR + 4*t, X[t]); madd(X[t], XR + 4*t, True)
stamp(16)
def w1b():
    a('s_cmp_ge_u32 s3, 6\ns_cbranch_scc1 k4_i')
    lin_loads(W1R[12:], 39, 12); a.label('k4_i')
ln_tail(X, 144, w1b); stamp(17)
gemm(12, 2, W1R, 144, 68, False, HL, 12288, vm=lambda k: (22 - 2*k + 2*min(k, NL)) if k >= 6 else 63, post=lambda k: lin_loads(W1R[2*k:2*k+2], 65, 2*k) if k < NL else None)
a(f's_lshl_b32 s44, s3, 13\nv_add_u32 v11, s44, v4\nv_add_u32 v11, {EX}, v11')
for i in range(8): a(f'ds_read_b128 {vr(W1R[16+i])}, v11 offset:{1024*i}')
stamp(18)
ga = -2 * math.sqrt(2 / math.pi) * math.log2(math.e)
a(f'v_mov_b32 v11, {hex(f2u(ga * 0.044715))}\nv_mov_b32 v10, {hex(f2u(ga))}')
for t in range(2):
    e = [vr(68 + 4*(p*2+t) + r, 2) for p in range(2) for r in (0, 2)]
    T = 144 + 8*t
    tt = [vr(T + 2*k, 2) for k in range(4)]
    for y, x in zip(tt, e): a(f'v_pk_mul_f32 {y}, {x}, {x}')
    for y, x in zip(tt, e): a(f'v_pk_fma_f32 {y}, {y}, v[10:11], v[10:11] op_sel:[0,1,0] op_sel_hi:[1,1,0]')
    for y, x in zip(tt, e): a(f'v_pk_mul_f32 {y}, {y}, {x}')
    for k in range(8): a(f'v_exp_f32 v{T+k}, v{T+k}')
    for y, x in zip(tt, e): a(f'v_pk_add_f32 {y}, {y}, 1.0 op_sel_hi:[1,0]')
    for k in range(8): a(f'v_rcp_f32 v{T+k}, v{T+k}')
    for y, x in zip(tt, e): a(f'v_pk_mul_f32 {y}, {y}, {x}')
    for k in range(4): a(f'v_cvt_pk_bf16_f32 v{T+k}, v{T+2*k}, v{T+2*k+1}')
    a(f'ds_write_b128 v5, {vr(T)} offset:{GL + t*12288}')
a('s_waitcnt lgkmcnt(0)\ns_barrier'); stamp(19)
def w2post(n):
    if NL + n < 8: lin_loads(W1R[2*(NL+n):2*(NL+n)+2], 65, 2*(NL+n))
w2post(0)
gemm(12, 2, W1R, 144, 68, False, GL, 12288, vm=lambda n: 63 if n < 4 else 2*min(8, NL+n+1) - 2*(n-4) - 2, post=lambda n: w2post(n+1), order=[8,9,10,11,0,1,2,3,4,5,6,7])
stamp(20)
a(f's_add_u32 s46, s37, {F4}\ns_lshl_b32 s47, s4, 2\ns_add_u32 s47, s47, s46')
sdiv(64, 3, 3)
a('s_cmp_eq_u32 s64, s4\ns_cbranch_scc1 k5_own')
a(f's_add_u32 s44, s36, {P3}\ns_add_u32 s45, s44, 12288')
for t in range(2):
    packx(84 + 4*t, X[t]); a(f'buffer_store_dwordx4 {vr(84+4*t)}, v4, s[8:11], s{44+t} offen sc1')
publish(47); finish(21)
a.label('k5_own'); a.fence()
publish(47)
spoll([(48, 4, 46, 0)], 4); stamp(21)
gather3(P3)
for t in range(2):
    packx(84 + 4*t, X[t]); a(f'buffer_store_dwordx4 {vr(84+4*t)}, v0, s[24:27], s{33+t} offen')
l = L()
a(f's_cmp_lg_u32 s2, {NRP}\ns_cbranch_scc1 {l}\ns_cmp_lg_u32 s3, 0\ns_cbranch_scc1 {l}\ns_mov_b32 s47, {EPO}')
publish(47); a.label(l)
finish(22)
a.label('repack'); a.hist = []
a('s_mul_i32 s4, s2, 12\ns_add_u32 s4, s4, s3\ns_waitcnt lgkmcnt(0)')
a(f's_add_u32 s46, s8, {EPO}\ns_addc_u32 s47, s9, 0\ns_load_dword s43, s[46:47], 0')
if CPF:
    a('s_getpc_b64 s[64:65]'); a.label('pcref')
    a(f's_sub_u32 s64, s64, pcref-{NAME}\ns_subb_u32 s65, s65, 0\ns_lshr_b32 s76, s2, 3\ns_mul_i32 s77, s3, 7\ns_add_u32 s76, s76, s77\ns_lshl_b32 s76, s76, 6')
    for i in range(4): a(f's_min_u32 s77, s76, repack-{NAME}\ns_load_dword s{78+i}, s[64:65], s77\ns_add_u32 s76, s76, {84*64}')
a('s_cmp_ge_u32 s4, 648\ns_cbranch_scc1 rp4\ns_cmp_ge_u32 s4, 288\ns_cbranch_scc1 rp2')
for which in (0, 1):
    if which == 0: a('s_cmp_ge_u32 s4, 144\ns_cbranch_scc1 rp1')
    else: a.label('rp1'); a('s_sub_u32 s4, s4, 144')
    ld, w = (2304, 3) if which == 0 else (3072, 4)
    srd(12, 54 if which == 0 else 58, 884736 if which == 0 else S)
    sdivmod(5, 6, 4, 12)
    a(f's_mul_i32 s44, s6, 11\ns_lshr_b32 s44, s44, 5\ns_mul_i32 s44, s44, 72\ns_lshl_b32 s45, s6, 3\ns_add_u32 s44, s44, s45\ns_mul_i32 s44, s44, {ld}\ns_mul_i32 s45, s5, {64*w}\ns_add_u32 s44, s44, s45')
    a(f'v_mul_u32_u24 v10, {24*ld}, v3\nv_mul_u32_u24 v11, {4*w}, v2\nv_add_u32 v10, v10, v11')
    for j in range(8): a(f'buffer_load_dwordx{w} {vr(16 + 4*j, w)}, v10, s[12:15], s44 offen\ns_add_u32 s44, s44, {ld}')
    a(f's_lshl_b32 s47, s5, 7\ns_lshl_b32 s45, s6, 2\ns_add_u32 s47, s47, s45\ns_add_u32 s47, s47, {FRQ if which == 0 else FR1}')
    if which == 0:
        a(f's_and_b32 s28, s5, 3\ns_mul_i32 s28, s28, 6\ns_lshr_b32 s29, s5, 2\ns_mul_i32 s44, s29, 3\ns_add_u32 s44, s44, s28\ns_mul_i32 s44, s44, 24576\ns_lshl_b32 s45, s6, 11\ns_add_u32 s44, s44, s45')
        a(f's_mul_i32 s30, s28, 12288\ns_lshl_b32 s45, s6, 10\ns_add_u32 s30, s30, s45\ns_add_u32 s30, s30, {24*24576}')
        a(f's_mov_b32 s33, 12288\ns_cmp_eq_u32 s29, 2\ns_cselect_b32 s44, s30, s44\ns_cselect_b32 s30, s33, 1024\ns_cselect_b32 s31, s33, 23552\ns_add_u32 s44, s44, {WQ}')
    else:
        a(f's_mul_i32 s44, s5, 98304\ns_lshl_b32 s45, s6, 11\ns_add_u32 s44, s44, s45\ns_add_u32 s44, s44, {W1P}\ns_mov_b32 s30, 1024\ns_mov_b32 s31, 23552')
    a('s_waitcnt vmcnt(0) lgkmcnt(0)\ns_add_u32 s43, s43, 1')
    perms(16, 4, w, 48)
    for f in range(2*w): a(f'buffer_store_dwordx4 {vr(48 + 4*f)}, v4, s[8:11], s44 offen sc1\ns_add_u32 s44, s44, s{30 + (f&1)}')
    publish(47); a('s_branch pf')
a.label('rp2'); a.hist = []
for which in (0, 1):
    if which == 0: a('s_cmp_ge_u32 s4, 360\ns_cbranch_scc1 rp3\ns_sub_u32 s4, s4, 288')
    else: a.label('rp3'); a('s_sub_u32 s4, s4, 360')
    srd(12, 56 if which == 0 else 60, 294912 if which == 0 else S)
    sdivmod(6, 5, 4, 12)
    scol(28, 5)
    a(f'v_lshrrev_b32 v10, 2, v2\nv_mul_u32_u24 v10, 48, v10\nv_and_b32 v11, 3, v2\nv_lshl_add_u32 v10, v11, 2, v10\nv_mul_u32_u24 v11, {(24 if which == 0 else 32)*768}, v3\nv_add3_u32 v10, v10, v11, s28')
    for b in range(2):
        a(f's_lshl_b32 s29, s6, 1\ns_add_u32 s29, s29, {b}')
        if which == 0:
            sdivmod(30, 31, 29, 3)
            a(f's_mul_i32 s46, s30, 96\ns_lshl_b32 s45, s31, 1\ns_add_u32 s46, s46, s45\ns_mul_i32 s{32+b}, s30, 12\ns_add_u32 s{32+b}, s{32+b}, s5\ns_mul_i32 s{32+b}, s{32+b}, 6144\ns_lshl_b32 s45, s31, 11\ns_add_u32 s{32+b}, s{32+b}, s45\ns_add_u32 s{32+b}, s{32+b}, {WP}')
        else:
            sdivmod(30, 31, 29, 12)
            a(f's_lshr_b32 s46, s29, 2\ns_lshl_b32 s46, s46, 7\ns_and_b32 s45, s29, 3\ns_lshl_b32 s45, s45, 1\ns_add_u32 s46, s46, s45\ns_mul_i32 s{32+b}, s30, 12\ns_add_u32 s{32+b}, s{32+b}, s5\ns_mul_i32 s{32+b}, s{32+b}, 24576\ns_lshl_b32 s45, s31, 11\ns_add_u32 s{32+b}, s{32+b}, s45\ns_add_u32 s{32+b}, s{32+b}, {W2P}')
        a('s_mul_i32 s46, s46, 768')
        for j in range(8):
            row = (6 if which == 0 else 8)*(j&3) + (j>>2)
            a(f's_add_u32 s44, s46, {row*768}\nbuffer_load_dword v{16 + 8*b + j}, v10, s[12:15], s44 offen')
    a(f's_lshl_b32 s47, s5, 7\ns_lshl_b32 s45, s6, 2\ns_add_u32 s47, s47, s45\ns_add_u32 s47, s47, {FRP if which == 0 else FR2}')
    a('s_waitcnt vmcnt(0) lgkmcnt(0)\ns_add_u32 s43, s43, 1')
    for b in range(2):
        perms(16 + 8*b, 1, 1, 32 + 8*b)
        for f in range(2): a(f'buffer_store_dwordx4 {vr(32 + 8*b + 4*f)}, v4, s[8:11], s{32+b} offen offset:{f*1024} sc1')
    publish(47); a('s_branch pf')
a.label('rp4'); a('s_waitcnt lgkmcnt(0)\ns_add_u32 s43, s43, 1')
a.label('pf'); a.fence(); stamp(1)
a(f's_lshr_b32 s4, s2, 3\ns_mul_i32 s5, s3, 7\ns_add_u32 s4, s4, s5\nv_mul_u32_u24 v4, {TS}, v1\ns_mov_b32 s7, 48\ns_cmp_ge_u32 s4, 48\ns_cbranch_scc1 ' + ('pf_t' if TLB else 'pf_n'))
a.label('pf_l')
sdivmod(5, 6, 4, 6)
a(f's_cmp_ge_u32 s6, 3\ns_cselect_b32 s6, 4, 0\ns_add_u32 s46, s5, s6')
sdiv(5, 4, 3)
a(f's_cmp_ge_u32 s4, 24\ns_cselect_b32 s46, s5, s46\ns_lshl_b32 s46, s46, 7\ns_add_u32 s46, s46, {FRQ}\ns_mov_b32 s28, 0\ns_mov_b32 s29, 11\ns_cmp_lt_u32 s4, 36\ns_cbranch_scc1 pf_go')
a(f's_mul_i32 s5, s5, 3\ns_sub_u32 s5, s4, s5\ns_lshl_b32 s46, s5, 9\ns_add_u32 s46, s46, {FRP}\ns_mov_b32 s28, 128\ns_mov_b32 s29, 5\ns_cmp_lt_u32 s4, 48\ns_cbranch_scc1 pf_go')
a(f's_lshr_b32 s46, s4, 2\ns_lshl_b32 s46, s46, 7\ns_add_u32 s46, s46, {FR1 - 12*128}\ns_mov_b32 s28, 0\ns_mov_b32 s29, 11\ns_cmp_lt_u32 s4, 96\ns_cbranch_scc1 pf_go')
sdivmod(5, 6, 4, 12)
a(f's_lshl_b32 s46, s6, 7\ns_mul_i32 s5, s5, 24\ns_add_u32 s46, s46, s5\ns_add_u32 s46, s46, {FR2 - 8*24}\ns_mov_b32 s29, 5')
a.label('pf_go')
a('v_min_u32 v10, s29, v2\nv_lshl_add_u32 v10, v10, 2, s46\nv_mad_u32_u24 v10, v3, s28, v10')
poll(10, 0x400, 'the_end')
a(f's_mul_i32 s44, s4, 24576\ns_add_u32 s44, s44, {WQ}')
for i in range(24576 // (64*TS)): a(f'buffer_load_dword v{16+i}, v4, s[8:11], s44 offen sc1\ns_add_u32 s44, s44, {64*TS}\ns_waitcnt vmcnt(0)')
a.label('pf_n')
if THR:
    a(f's_cmp_lg_u32 s7, 48\ns_cbranch_scc1 pf_m\ns_min_u32 s46, s4, 71\ns_lshl_b32 s46, s46, 7\ns_add_u32 s46, s46, {F1}\nv_lshl_add_u32 v10, v2, 2, s46')
    poll(10, 0x40); a.label('pf_m')
a(f's_cmp_ge_u32 s3, {NW}\ns_cbranch_scc1 the_end\ns_add_u32 s4, s4, s7\ns_mov_b32 s7, {7*NW}\ns_cmp_lt_u32 s4, 144\ns_cbranch_scc1 pf_l\ns_waitcnt vmcnt(0)')
finish(2)
a.label('the_end'); a('s_endpgm')
if TLB:
    a.label('pf_t'); srd(24, 62, S)
    a(f'v_min_u32 v10, 8, v1\nv_lshlrev_b32 v10, 16, v10\ns_sub_u32 s44, s4, 48\ns_mul_i32 s44, s44, {S//2}\nbuffer_load_dword v16, v10, s[8:11], s44 offen sc1')
    a(f'v_min_u32 v11, 17, v1\nv_lshlrev_b32 v11, 16, v11\nbuffer_load_dword v17, v11, s[24:27], 0 offen sc1\nv_min_u32 v11, 3, v1\nv_lshlrev_b32 v11, 16, v11\ns_mov_b32 s44, {FLG + 64}\nbuffer_load_dword v18, v11, s[8:11], s44 offen sc1\ns_waitcnt vmcnt(0)\ns_endpgm')
hdr = open('standalone__video_videomae__vision.s.ref').read().split('; Override')[0]
out = hdr + f'; @launch grid=({NRP+192},1,1) block=(768,1,1) lds=163840\n.amdgcn_target "amdgcn-amd-amdhsa--gfx950"\n.text\n' + a.text() + f'''.section .rodata,"a"
.p2align 6
.amdhsa_kernel {NAME}
  .amdhsa_next_free_vgpr 168
  .amdhsa_next_free_sgpr 102
  .amdhsa_accum_offset 168
  .amdhsa_group_segment_fixed_size 0
  .amdhsa_kernarg_size 80
  .amdhsa_user_sgpr_count 2
  .amdhsa_user_sgpr_kernarg_segment_ptr 1
  .amdhsa_system_sgpr_workgroup_id_x 1
.end_amdhsa_kernel
'''
open(sys.argv[1], 'w').write(out)
```

```python
import sys, math, struct
from emit import Asm
S = 1179648
P1, KF, VF, P2, P3, WQ, WP, W1P, W2P, FLG = 0, 6*S, 7*S, 8*S, 13*S, 21*S, 21*S+884736, 22*S, 23*S, 25*S
F1, F2K, F2V, F3, F4, FRQ, FR1, FRP, FR2, EPO = [FLG + 128*x for x in (0, 72, 264, 360, 936, 1512, 1524, 1536, 1548, 1560)]
WSN = 26*S
def f2u(x): return struct.unpack('<I', struct.pack('<f', x))[0]
SC = (96 ** -0.5) * math.log2(math.e)
MF = 'v_mfma_f32_16x16x32_bf16'
def vr(a, n=4): return f'v[{a}:{a+n-1}]'
a = Asm()
DIAG = '--diag' in sys.argv
TLB = '--tlb' in sys.argv
HY = '--hy' in sys.argv
CPF = '--cpf' in sys.argv
SL = int(sys.argv[sys.argv.index('--sl')+1]) if '--sl' in sys.argv else 3
SB = 0x100 if '--sb' in sys.argv else 0x10000
THR = '--thr' in sys.argv
NW = int(sys.argv[sys.argv.index('--nw')+1]) if '--nw' in sys.argv else 3
NL = int(sys.argv[sys.argv.index('--nl')+1]) if '--nl' in sys.argv else 4
GD = '--gd' in sys.argv
NPRE = int(sys.argv[sys.argv.index('--npre')+1]) if '--npre' in sys.argv else 2
TS = 64 if '--t64' in sys.argv else 128
SEL = 56 + 77
NRP = 56
lab = [0]
def L(): lab[0] += 1; return f'L{lab[0]}'
def stamp(i):
    if GD: a(f's_memrealtime s[66:67]\ns_waitcnt lgkmcnt(0)\ns_mov_b32 s{70+i}, s66')
    elif DIAG: a(f's_memtime s[66:67]\ns_waitcnt lgkmcnt(0)\ns_sub_u32 s{70+i}, s66, s98')
def finish(n):
    if DIAG:
        a('s_waitcnt vmcnt(0)'); stamp(n)
        l = L()
        a((f's_cmp_lg_u32 s3, {0 if n == 2 else 11}\ns_cbranch_scc1 {l}\ns_lshl_b32 s44, s2, 7\n' if GD else f's_cmp_lg_u32 s2, {SEL}\ns_cbranch_scc1 {l}\ns_lshl_b32 s44, s3, 7\n') + f's_add_u32 s44, s44, {FLG + 0x40000}\nv_mov_b32 v1, 0')
        for i in range(28): a(f'v_mov_b32 v2, s{70+i}\nbuffer_store_dword v2, v1, s[8:11], s44 offen offset:{4*i}')
        a.label(l)
    a('s_endpgm')
def srd(d, p, nb): a(f's_mov_b32 s{d}, s{p}\ns_mov_b32 s{d+1}, s{p+1}\ns_mov_b32 s{d+2}, {nb}\ns_mov_b32 s{d+3}, 0x20000')
def sdiv(dst, src, d): a(f's_mul_i32 s{dst}, s{src}, {65536 // d + 1}\ns_lshr_b32 s{dst}, s{dst}, 16')
def sdivmod(q, r, src, d): sdiv(q, src, d); a(f's_mul_i32 s{r}, s{q}, {d}\ns_sub_u32 s{r}, s{src}, s{r}')
def lin_loads(regs, sbase, first=0):
    for n, r in enumerate(regs):
        i = first + n
        if n == 0 or i % 4 == 0: a(f's_add_u32 s44, s{sbase}, {(i // 4) * 4096}')
        a(f'buffer_load_dwordx4 {vr(r)}, v4, s[8:11], s44 offen offset:{(i % 4) * 1024} sc1')
def greduce(v, t, op):
    a(f'v_mov_b32 v{t}, v{v}\nv_permlane32_swap_b32 v{v}, v{t}\n{op} v{v}, v{v}, v{t}')
    a(f'v_mov_b32 v{t}, v{v}\nv_permlane16_swap_b32 v{v}, v{t}\n{op} v{v}, v{v}, v{t}')
def greduce_n(vs, t, op):
    for sw in ('32', '16'):
        for k, v in enumerate(vs): a(f'v_mov_b32 v{t+k}, v{v}')
        for k, v in enumerate(vs): a(f'v_permlane{sw}_swap_b32 v{v}, v{t+k}')
        for k, v in enumerate(vs): a(f'{op} v{v}, v{v}, v{t+k}')
def xred_write(v, n, t, op, off):
    greduce_n(list(range(v, v+n)), t, op)
    a(f'ds_write_b{32*n} v{6 if n == 4 else 8}, {vr(v, n)} offset:{off}')
def xred_read(v, n, t, op, off):
    for k in range(3): a(f'ds_read_b{32*n} {vr(t + n*k, n)}, v{7 if n == 4 else 9} offset:{off + 4*n*k}')
    a('s_waitcnt lgkmcnt(0)')
    for k in range(n):
        if op == 'v_max_f32': a(f'v_max3_f32 v{v+k}, v{t+k}, v{t+n+k}, v{t+2*n+k}')
        else: a(f'v_add_f32 v{v+k}, v{t+k}, v{t+n+k}\nv_add_f32 v{v+k}, v{v+k}, v{t+2*n+k}')
    greduce_n(list(range(v, v+n)), t, op)
C = {}
def mk_ar(b):
    C['ar'] = b; a('v_lshrrev_b32 v11, 2, v2')
    for r in range(4): a(f'v_cmp_eq_u32 vcc, {r}, v11\nv_cndmask_b32_e64 v{b+r}, 0, 1.0, vcc')
def mk_sel(b):
    C['sel'] = b; a('v_lshlrev_b32 v11, 2, v3\nv_sub_u32 v11, v2, v11')
    for r in range(4): a(f'v_cmp_eq_u32 vcc, {r}, v11\nv_cndmask_b32_e64 v{b+4+r}, 0, 1.0, vcc\nv_lshrrev_b32 v{b+r}, 16, v{b+4+r}')
def gsum(d, v, n):
    for r in range(n): a(f'v_mfma_f32_16x16x4_f32 {vr(d)}, v{C["ar"]+r}, v{v+r}, {vr(d) if r else 0}')
def madd(X, r, first=False):
    for q in range(2): a(f'{MF} {vr(X[q])}, {vr(C["sel"]+4*q)}, {vr(r)}, {0 if first else vr(X[q])}')
def poll(va, bound=0x8000, fail=None):
    l, d = L(), L()
    a(f's_mov_b32 s45, {bound}'); a.label(l)
    a(f'buffer_load_dword v11, v{va}, s[8:11], 0 offen sc1\ns_waitcnt vmcnt(0)\nv_cmp_ne_u32 vcc, s43, v11\ns_nop 1\ns_cbranch_vccz {d}')
    a(f's_sub_u32 s45, s45, 1\ns_cbranch_scc1 {fail or d}\ns_sleep 1\ns_branch {l}'); a.label(d)
def spoll(lds, n, fb=None):
    l, d = L(), L()
    a(f's_mov_b32 s45, {SB}'); a.label(l)
    for dst, w, so, im in lds: a(f's_load_dwordx{w} s[{dst}:{dst+w-1}], s[8:9], s{so} offset:{im}' + ('' if fb else ' glc'))
    a('s_waitcnt lgkmcnt(0)')
    if n & 1: a(f's_mov_b32 s{48+n}, s43')
    for k in range(48, 48 + n, 2): a(f's_xor_b64 s[{k}:{k+1}], s[{k}:{k+1}], s[100:101]')
    for k in range(50, 48 + n, 2): a(f's_or_b64 s[48:49], s[48:49], s[{k}:{k+1}]')
    if fb:
        a(f's_cbranch_scc0 {d}'); flag_addr(10, fb); poll(10)
    else: a(f's_cbranch_scc0 {d}\ns_sub_u32 s45, s45, 1\ns_cbranch_scc1 {d}\ns_sleep {SL}\ns_branch {l}')
    a.label(d)
def flag_addr(va, groups):
    g0 = groups[0]
    a(f'v_min_u32 v{va}, {g0[1]-1}, v2\nv_lshl_add_u32 v{va}, v{va}, 2, s{g0[0]}')
    for k, (sb, n) in enumerate(groups[1:], 1):
        a(f'v_min_u32 v11, {n-1}, v2\nv_lshl_add_u32 v11, v11, 2, s{sb}\nv_cmp_eq_u32 vcc, {k}, v3\nv_cndmask_b32 v{va}, v{va}, v11, vcc')
def publish(sf):
    a(f'v_mov_b32 v11, s43\nv_mov_b32 v10, 0\ns_waitcnt vmcnt(0)\ns_mov_b64 exec, 1\nbuffer_store_dword v11, v10, s[8:11], s{sf} offen sc1\ns_mov_b64 exec, -1')
def unpack(dl, dh, r):
    for k in range(4): a(f'v_lshlrev_b32 v{dl+k}, 16, v{r+k}\nv_and_b32 v{dh+k}, s42, v{r+k}')
def addsrc(X, r, T):
    unpack(T, T+4, r)
    for q in range(2):
        for k in (0, 2): a(f'v_pk_add_f32 {vr(X[q]+k,2)}, {vr(X[q]+k,2)}, {vr(T+4*q+k,2)}')
def packx(d, X):
    for k in range(4): a(f'v_cvt_pk_bf16_f32 v{d+k}, v{X[0]+k}, v{X[1]+k}')
HL, ST, OL, QL, PL, EX = 0, 24576, 28672, 34816, 40960, 65536
MX, SM, GL, QK = ST, ST + 1536, PL, HL
XR = 12
def ln_tail(X, T, mid=None):
    s = T + 12
    for t in range(2):
        p = [vr(X[t][q]+k, 2) for q in range(2) for k in (0, 2)]
        a(f'v_pk_add_f32 {vr(T,2)}, {p[0]}, {p[1]}\nv_pk_mul_f32 {vr(T+2,2)}, {p[0]}, {p[0]}\nv_pk_add_f32 {vr(T,2)}, {vr(T,2)}, {p[2]}')
        a(f'v_pk_fma_f32 {vr(T+2,2)}, {p[1]}, {p[1]}, {vr(T+2,2)}\nv_pk_add_f32 {vr(T,2)}, {vr(T,2)}, {p[3]}')
        a(f'v_pk_fma_f32 {vr(T+2,2)}, {p[2]}, {p[2]}, {vr(T+2,2)}\nv_pk_fma_f32 {vr(T+2,2)}, {p[3]}, {p[3]}, {vr(T+2,2)}')
        a(f'v_add_f32 v{s+2*t}, v{T}, v{T+1}\nv_add_f32 v{s+2*t+1}, v{T+2}, v{T+3}')
    gsum(T+4, s, 4)
    a('v_and_b32 v10, 3, v2\nv_cmp_eq_u32 vcc, v10, v3\nv_cndmask_b32_e64 v10, 0, 1.0, vcc')
    a(f'ds_write_b32 v6, v{T+4} offset:{ST}\ns_waitcnt lgkmcnt(0)\ns_barrier')
    for k in range(3): a(f'ds_read_b128 {vr(T + 4*k)}, v7 offset:{ST + 16*k}')
    if mid: mid()
    a('s_waitcnt lgkmcnt(0)')
    for k in (1, 2):
        for j in (0, 2): a(f'v_pk_add_f32 {vr(T+j,2)}, {vr(T+j,2)}, {vr(T+4*k+j,2)}')
    a(f'v_pk_add_f32 {vr(T,2)}, {vr(T,2)}, {vr(T+2,2)}\nv_add_f32 v{T}, v{T}, v{T+1}\nv_mfma_f32_16x16x4_f32 {vr(s)}, v10, v{T}, 0')
    for t in range(2):
        m, q = s + 2*t, s + 2*t + 1
        a(f'v_mul_f32 v{m}, {hex(f2u(1/384))}, v{m}\nv_mul_f32 v{q}, {hex(f2u(1/384))}, v{q}\nv_fma_f32 v{q}, -v{m}, v{m}, v{q}')
        a(f'v_max_f32 v{q}, 0, v{q}\nv_add_f32 v{q}, {hex(f2u(1e-5))}, v{q}\nv_rsq_f32 v{q}, v{q}\nv_mul_f32 v{m}, -v{m}, v{q}')
    for t in range(2):
        for q in range(2):
            for k in (0, 2):
                p = vr(X[t][q]+k, 2)
                a(f'v_pk_fma_f32 {p}, {p}, {vr(s+2*t,2)}, {vr(s+2*t,2)} op_sel:[0,1,0] op_sel_hi:[1,1,0]')
        packx(T + 4*t, X[t])
        a(f'ds_write_b128 v5, {vr(T+4*t)} offset:{HL + t*12288}')
    a('s_waitcnt lgkmcnt(0)\ns_barrier')
def gemm(nk, nf, Wr, B, acc, swap, boff, tstride, vm=None, post=None, order=None):
    order = order or list(range(nk))
    def rd(k):
        for t in range(2): a(f'ds_read_b128 {vr(B + 4*((k%2)*2 + t))}, v4 offset:{boff + t*tstride + order[k]*1024}')
    rd(0)
    for k in range(nk):
        if k + 1 < nk: rd(k + 1)
        a(f's_waitcnt lgkmcnt({2 if k+1 < nk else 0})' + (f' vmcnt({vm(k)})' if vm else ''))
        for f in range(nf):
            for t in range(2):
                w = vr(Wr[order[k]*nf + f]); b = vr(B + 4*((k%2)*2 + t)); c = vr(acc + 4*(f*2 + t))
                x, y = (b, w) if swap else (w, b)
                a(f'{MF} {c}, {x}, {y}, {c if k else 0}')
        if post: post(k)
def perms(raw, stride, w, dst):
    for f in range(2*w):
        m, p = f >> 1, f & 1
        for d in range(4): a(f'v_perm_b32 v{dst + 4*f + d}, v{raw + (2*d+1)*stride + m}, v{raw + 2*d*stride + m}, s{40+p}')
def scol(dst, k):
    a(f's_mul_i32 s{dst}, s{k}, 11\ns_lshr_b32 s{dst}, s{dst}, 5\ns_mul_i32 s{dst}, s{dst}, 144\ns_lshl_b32 s45, s{k}, 4\ns_add_u32 s{dst}, s{dst}, s45')
NAME = 'standalone__video_videomae__vision_kernel'
a.raw(f'.globl {NAME}\n.p2align 8\n.type {NAME},@function\n{NAME}:')
if DIAG: a('s_memtime s[98:99]')
if GD: a('s_memrealtime s[96:97]')
a(f's_cmp_ge_u32 s2, {NRP+192}\ns_cbranch_scc1 the_end')
a('s_load_dwordx16 s[48:63], s[0:1], 0\ns_load_dwordx2 s[8:9], s[0:1], 72')
a('v_lshrrev_b32 v5, 6, v0\nv_and_b32 v1, 63, v0\nv_readfirstlane_b32 s3, v5\nv_and_b32 v2, 15, v0\nv_bfe_u32 v3, v0, 4, 2\nv_lshlrev_b32 v4, 4, v1')
a(f's_mov_b32 s10, {WSN}\ns_mov_b32 s11, 0x20000\ns_mov_b32 s40, 0x05040100\ns_mov_b32 s41, 0x07060302\ns_mov_b32 s42, 0xffff0000')
a(f's_cmp_lt_u32 s2, {NRP}\ns_cbranch_scc1 repack')
a(f's_sub_u32 s46, s2, {NRP}\ns_and_b32 s47, s46, 7\ns_lshr_b32 s46, s46, 3\ns_and_b32 s4, s46, 3\ns_lshr_b32 s5, s47, 1\ns_and_b32 s44, s47, 1')
a(('s_and_b32 s4, s46, 1\ns_lshl_b32 s45, s44, 1\ns_add_u32 s4, s4, s45\ns_lshr_b32 s6, s46, 1\n' if HY else 's_mul_i32 s6, s44, 6\ns_lshr_b32 s45, s46, 2\ns_add_u32 s6, s6, s45\n') + 's_lshl_b32 s7, s5, 2\ns_add_u32 s7, s7, s4')
a('s_mov_b32 s28, s5\ns_lshl_b32 s29, s46, 1\ns_add_u32 s29, s29, s44\ns_mul_i32 s30, s5, 12\ns_add_u32 s30, s30, s6\ns_lshl_b32 s31, s30, 1')
scol(32, 3)
a('v_and_b32 v10, 3, v2\nv_mul_u32_u24 v10, 384, v10\nv_lshrrev_b32 v11, 2, v2\ns_lshl_b32 s44, s29, 3\nv_add3_u32 v10, v10, v11, s44\nv_mul_u32_u24 v10, 768, v10')
a('v_mul_u32_u24 v11, 48, v3\nv_add_u32 v10, v10, v11\nv_mul_u32_u24 v9, 768, v2\nv_add_u32 v9, v9, v11')
a('s_mul_i32 s33, s31, 12288\ns_add_u32 s33, s33, s32\ns_add_u32 s34, s33, 12288')
a('s_waitcnt lgkmcnt(0)')
a(f's_add_u32 s46, s8, {EPO}\ns_addc_u32 s47, s9, 0\ns_load_dword s43, s[46:47], 0')
srd(12, 48, S); srd(16, 50, 884736); srd(20, 52, 294912); srd(24, 62, S)
stamp(0)
a(f'buffer_load_dwordx4 {vr(20)}, v10, s[12:15], s32 offen\nbuffer_load_dwordx4 {vr(24)}, v10, s[12:15], s32 offen offset:3072')
def common_addrs():
    a('v_mov_b32 v0, v9\ns_lshl_b32 s44, s3, 10\nv_add_u32 v5, s44, v4')
    a('v_mul_u32_u24 v7, 192, v2\ns_lshl_b32 s44, s3, 4\nv_add_u32 v6, s44, v7\nv_lshrrev_b32 v8, 1, v6\nv_mad_u32_u24 v7, v3, 48, v7\nv_lshrrev_b32 v9, 1, v7\ns_lshl_b32 s44, s3, 2\nv_add_u32 v6, s44, v7')
def ln1(after, mid):
    X = [(28, 32), (36, 40)]
    mk_ar(60)
    for t in range(2):
        if t == 0: stamp(23)
        a(f's_waitcnt vmcnt({after + (1 - t if after > 0 else 0)})'); unpack(X[t][0], X[t][1], 20 + 4*t)
    stamp(24)
    ln_tail(X, 44, mid)
    a('s_add_u32 s43, s43, 1\ns_mov_b32 s100, s43\ns_mov_b32 s101, s43')
a('s_lshr_b32 s47, s29, 3\ns_sub_u32 s44, s3, 6\ns_cmp_eq_u32 s44, 3\ns_cbranch_scc1 k1_tx\ns_cmp_ge_u32 s44, 3\ns_cbranch_scc1 k1_nt')
a('s_lshr_b32 s45, s29, 1\ns_mul_i32 s45, s45, 3\ns_add_u32 s44, s44, s45\ns_lshl_b32 s44, s44, 6\nv_add_u32 v11, s44, v1\ns_cmp_ge_u32 s44, 3456\ns_cbranch_scc1 k1_tp')
a('v_mul_u32_u24 v10, 21846, v11\nv_lshrrev_b32 v10, 16, v10\nv_mul_u32_u24 v10, 576, v10\nv_lshl_add_u32 v10, v11, 6, v10\ns_mul_i32 s44, s28, 192\nbuffer_load_dword v28, v10, s[16:19], s44 offen\ns_branch k1_nt')
a.label('k1_tx')
a('v_min_u32 v10, 47, v1\nv_lshlrev_b32 v10, 7, v10\ns_lshl_b32 s44, s31, 1\ns_add_u32 s44, s44, s4\ns_mul_i32 s44, s44, 6144\nbuffer_load_dword v28, v10, s[12:15], s44 offen\ns_branch k1_nt')
a.label('k1_tp')
a('v_lshlrev_b32 v10, 6, v11\nv_subrev_u32 v10, 221184, v10\ns_mul_i32 s44, s28, 73728\nbuffer_load_dword v28, v10, s[20:23], s44 offen')
a.label('k1_nt')
a('s_mov_b32 s69, s47\ns_barrier\ns_cmp_ge_u32 s3, 6\ns_cbranch_scc1 k1_proj')
sdivmod(35, 36, 3, 3)
RING, FR, B, ACC = 104, 72, 96, 20
a('v_mul_u32_u24 v68, 55296, v3\nv_mul_u32_u24 v69, 12, v2\ns_mul_i32 s44, s36, 768\ns_mul_i32 s45, s28, 192\ns_add_u32 s44, s44, s45\ns_mul_i32 s45, s35, 442368\ns_add_u32 s44, s44, s45\nv_add3_u32 v68, v68, v69, s44')
for q in range(1, 4): a(f'v_add_u32 v{68+q}, {q*4608}, v68')
def wl(k):
    a(f's_mov_b32 s44, {(96*(k//3) + 8*(k%3))*2304}')
    for j in range(8): a(f'buffer_load_dwordx3 {vr(RING + (k%2)*32 + 4*j, 3)}, v{68 + j//2}, s[16:19], s44 offen offset:{(j&1)*2304}')
for k in range(NPRE): wl(k)
def mid1():
    a('s_waitcnt vmcnt(8)'); perms(RING, 4, 3, FR); wl(2)
common_addrs(); ln1(8*NPRE, mid1); stamp(1)
for k in range(NPRE, 2): wl(k)
a('s_mul_i32 s44, s35, 18432\nv_add_u32 v10, s44, v4\ns_mul_i32 s44, s35, 6144\ns_sub_u32 s44, 12288, s44\nv_add_u32 v11, s44, v4')
W2K = [72 + 4*i for i in range(24)]
def rpoll(): spoll([(48, 8, 38, 0), (56, 4, 38, 32)], 12, [(38, 12)])
def rpoll2():
    a(f's_lshl_b32 s46, s3, 7\ns_add_u32 s47, s46, {FR2}\ns_mul_i32 s44, s4, 24\ns_add_u32 s47, s47, s44\ns_add_u32 s46, s46, {FRP}')
    a(f's_mul_i32 s39, s4, 12\ns_add_u32 s39, s39, s3\ns_lshr_b32 s64, s39, 2\ns_lshl_b32 s64, s64, 7\ns_add_u32 s64, s64, {FR1}')
    spoll([(48, 4, 46, 0), (52, 2, 46, 16), (54, 2, 47, 16), (56, 4, 47, 0)], 12, [(46, 6), (47, 6)])
    spoll([(48, 8, 64, 0), (56, 4, 64, 32)], 12, [(64, 12)])
def k2pre(n=24):
    stamp(3)
    a(f's_lshl_b32 s38, s35, 2\ns_add_u32 s38, s38, s4\ns_lshl_b32 s38, s38, 7\ns_add_u32 s38, s38, {FRQ}')
    rpoll()
    a(f's_mul_i32 s46, s4, 6\ns_add_u32 s46, s46, s3\ns_mul_i32 s46, s46, 24576\ns_add_u32 s46, s46, {WQ}')
    if n == 24: a('s_barrier')
    lin_loads(W2K[:n], 46)
for role in ('qk', 'v'):
    if role == 'qk': a('s_cmp_eq_u32 s36, 2\ns_cbranch_scc1 k1_v')
    else: a.label('k1_v')
    for k in range(6):
        for t in range(2): a(f'ds_read_b128 {vr(B + 4*t)}, v{10+t} offset:{HL + k*1024}')
        if k:
            a(f's_waitcnt vmcnt({8 if k < 5 else 0})')
            perms(RING + (k%2)*32, 4, 3, FR)
            if k + 2 < 6: wl(k + 2)
        a('s_waitcnt lgkmcnt(0)')
        for f in range(6):
            for t in range(2):
                w = vr(FR + 4*f); b = vr(B + 4*t); c = vr(ACC + 4*(f*2 + t))
                x, y = (b, w) if role == 'v' else (w, b)
                a(f'{MF} {c}, {x}, {y}, {c if k else 0}')
    stamp(2)
    a(f's_lshl_b32 s44, s36, 1\ns_add_u32 s44, s44, s35\ns_mul_i32 s46, s44, 3072\ns_mul_i32 s45, s44, 6144\ns_add_u32 s45, s45, {EX}\nv_add_u32 v10, s45, v4\ns_xor_b32 s44, s44, 1\ns_mul_i32 s45, s44, 6144\ns_add_u32 s45, s45, {EX}\nv_add_u32 v11, s45, v4')
    for f in range(6): a(f'ds_write_b128 v11, {vr(ACC + 8*f + 4)} offset:{f*1024}')
    a('s_waitcnt lgkmcnt(0)\ns_barrier')
    for f in range(6): a(f'ds_read_b128 {vr(ACC + 8*f + 4)}, v10 offset:{f*1024}')
    a('v_add_u32 v10, s46, v4')
    for f in range(6):
        a(f's_waitcnt lgkmcnt({5-f})')
        for k in (0, 2): a(f'v_pk_add_f32 {vr(ACC+8*f+k,2)}, {vr(ACC+8*f+k,2)}, {vr(ACC+8*f+4+k,2)}')
    if role == 'qk':
        for r in range(4):
            for f in (0, 2, 4): a(f'v_cvt_pk_bf16_f32 v{FR + 3*r + f//2}, v{ACC + 8*f + r}, v{ACC + 8*(f+1) + r}')
        for i in range(3): a(f'ds_write_b128 v10, {vr(FR + 4*i)} offset:{QK + i*1024}')
        a('s_waitcnt lgkmcnt(0)\ns_barrier')
        k2pre(12)
        a('s_barrier\ns_barrier'); lin_loads(W2K[12:], 46, 12); a('s_branch k2')
    else:
        for f in range(6):
            c = ACC + 8*f
            a(f'v_cvt_pk_bf16_f32 v{FR+4*f}, v{c}, v{c+1}\nv_cvt_pk_bf16_f32 v{FR+4*f+1}, v{c+2}, v{c+3}\nv_mov_b32 v{FR+4*f+2}, 0\nv_mov_b32 v{FR+4*f+3}, 0')
        a(f'v_lshrrev_b32 v11, 2, v2\nv_cmp_eq_u32 vcc, v11, v3\ns_mov_b32 s44, {hex(f2u(SC))}\nv_mov_b32 v102, 0\nv_mov_b32 v103, 0\ns_mul_i32 s46, s35, 3072\nv_add_u32 v10, s46, v4\ns_barrier')
        for i in range(3): a(f'ds_read_b128 {vr(RING + 8*i)}, v10 offset:{QK + i*1024}\nds_read_b128 {vr(RING + 8*i + 4)}, v10 offset:{QK + 6144 + i*1024}')
        c, m = 96, 68
        for i in range(3): a(f's_waitcnt lgkmcnt({4-2*i})\n{MF} {vr(c)}, {vr(RING + 8*i + 4)}, {vr(RING + 8*i)}, {vr(c) if i else 0}')
        a(f'v_max3_f32 v{m}, v{c}, v{c+1}, v{c+2}\nv_max_f32 v{m}, v{m}, v{c+3}\nv_mul_f32 v{m}, s44, v{m}')
        for r in range(4): a(f'v_fma_f32 v{c+r}, v{c+r}, s44, -v{m}')
        for r in range(4): a(f'v_exp_f32 v{c+r}, v{c+r}')
        a(f'v_add_f32 v{m}, v{c}, v{c+1}\nv_add_f32 v{m+1}, v{c+2}, v{c+3}\nv_add_f32 v{m}, v{m}, v{m+1}\nv_rcp_f32 v{m}, v{m}')
        for r in range(4): a(f'v_mul_f32 v{c+r}, v{c+r}, v{m}')
        a(f'v_cvt_pk_bf16_f32 v100, v{c}, v{c+1}\nv_cvt_pk_bf16_f32 v101, v{c+2}, v{c+3}\nv_cndmask_b32 v100, 0, v100, vcc\nv_cndmask_b32 v101, 0, v101, vcc')
        for f in range(6): a(f'{MF} {vr(ACC + 4*f)}, {vr(FR + 4*f)}, {vr(100)}, 0')
        for r in range(4):
            for f in (0, 2, 4): a(f'v_cvt_pk_bf16_f32 v{RING + 3*r + f//2}, v{ACC + 4*f + r}, v{ACC + 4*(f+1) + r}')
        for i in range(3): a(f'ds_write_b128 v10, {vr(RING + 4*i)} offset:{OL + i*1024}')
        a('s_waitcnt lgkmcnt(0)\ns_barrier')
k2pre()
a('s_branch k2')
a.label('k1_proj'); a.hist = []
a('s_sub_u32 s35, s3, 6\ns_lshl_b32 s44, s35, 1\nv_bfe_u32 v68, v2, 1, 1\nv_add_u32 v68, s44, v68\nv_mul_u32_u24 v69, 11, v68\nv_lshrrev_b32 v69, 5, v69\nv_mul_u32_u24 v69, 144, v69')
a('v_lshl_add_u32 v68, v68, 4, v69\nv_lshrrev_b32 v69, 2, v2\nv_mul_u32_u24 v69, 48, v69\nv_and_b32 v70, 1, v2\nv_lshlrev_b32 v70, 3, v70\nv_add3_u32 v68, v68, v69, v70')
a('v_mul_u32_u24 v69, 18432, v3\nv_add_u32 v68, v68, v69\nv_add_u32 v69, 3072, v68\ns_mul_i32 s46, s28, 73728')
RAW, FR = 120, 72
def pl(i):
    a(f's_add_u32 s44, s46, {i*6144}')
    for j in range(8): a(f'buffer_load_dwordx2 {vr(RAW + 16*i + 2*j, 2)}, v{68 + j//4}, s[20:23], s44 offen offset:{(j&3)*768}')
common_addrs(); ln1(0, lambda: pl(0)); stamp(1)
pl(1); a('s_barrier\ns_setprio 2'); pl(2); a('s_barrier')
a('v_and_b32 v70, 3, v2\nv_lshlrev_b32 v70, 8, v70\nv_lshrrev_b32 v71, 2, v2\nv_lshl_add_u32 v71, v3, 2, v71\nv_lshl_add_u32 v70, v71, 4, v70')
a(f's_mul_i32 s36, s29, 24576\ns_mul_i32 s44, s28, {S}\ns_add_u32 s36, s36, s44\ns_lshl_b32 s44, s35, 12\ns_add_u32 s36, s36, s44')
a(f's_lshr_b32 s37, s29, 2\ns_mul_i32 s37, s37, 6\ns_add_u32 s37, s37, s35\ns_lshl_b32 s37, s37, 7\ns_and_b32 s44, s29, 3\ns_lshl_b32 s44, s44, 4\ns_add_u32 s37, s37, s44\ns_lshl_b32 s44, s28, 2\ns_add_u32 s37, s37, s44\ns_add_u32 s37, s37, {F1}')
for i in range(2):
    a(f's_waitcnt vmcnt({8*(2-i)})'); perms(RAW + 16*i, 2, 2, FR + 16*i)
a(f's_lshl_b32 s38, s4, 7\ns_add_u32 s38, s38, {FRQ + 8*128}')
rpoll(); a('s_waitcnt vmcnt(0)'); perms(RAW + 32, 2, 2, FR + 32)
stamp(2)
W2V = [120 + 4*i for i in range(12)]
a('s_barrier'); stamp(3)
gemm(3, 4, [FR + 4*i for i in range(12)], 52, 20, False, OL, 3072)
for t in range(2):
    for rho in range(2):
        d = 52 + 4*(t*2+rho); A_ = lambda f, r: f'v{20 + 4*(f*2 + t) + r}'
        a(f'v_cvt_pk_bf16_f32 v{d}, {A_(0,2*rho)}, {A_(1,2*rho)}\nv_cvt_pk_bf16_f32 v{d+1}, {A_(2,2*rho)}, {A_(3,2*rho)}')
        a(f'v_cvt_pk_bf16_f32 v{d+2}, {A_(0,2*rho+1)}, {A_(1,2*rho+1)}\nv_cvt_pk_bf16_f32 v{d+3}, {A_(2,2*rho+1)}, {A_(3,2*rho+1)}')
        a(f'buffer_store_dwordx4 {vr(d)}, v70, s[8:11], s36 offen offset:{rho*2048 + t*1024} sc1')
a('s_barrier')
publish(37); stamp(25)
a('s_setprio 0')
a(f's_mul_i32 s46, s4, 6\ns_add_u32 s46, s46, s35\ns_mul_i32 s46, s46, 12288\ns_add_u32 s46, s46, {WQ + 24*24576}')
lin_loads(W2V, 46)
a.label('k2'); a.fence(); stamp(4)
a(f'buffer_load_dwordx4 {vr(XR)}, v0, s[12:15], s33 offen\nbuffer_load_dwordx4 {vr(XR+4)}, v0, s[12:15], s34 offen')
rpoll2()
a(f's_mul_i32 s65, s39, 24576\ns_add_u32 s65, s65, {W2P}\ns_lshl_b32 s64, s3, 13\ns_add_u32 s64, s64, {EX}')
def dma(q):
    a(f's_add_u32 m0, s64, {4096*q}\ns_add_u32 s44, s65, {16384 + 4096*q}')
    for i in range(4): a(f'buffer_load_dwordx4 v4, s[8:11], s44 offen offset:{1024*i} sc1 lds')
a(f's_mul_i32 s46, s6, 6\ns_lshr_b32 s44, s3, 1\ns_add_u32 s46, s46, s44\ns_lshl_b32 s46, s46, 7\ns_add_u32 s46, s46, {F1}')
a('s_mul_i32 s38, s31, 12288\ns_lshl_b32 s44, s3, 10\ns_add_u32 s38, s38, s44')
mk_sel(60); mk_ar(68)
a('v_lshrrev_b32 v52, 3, v2\nv_mul_u32_u24 v52, 24576, v52\nv_bfe_u32 v53, v2, 2, 1\nv_lshl_add_u32 v52, v53, 10, v52\nv_lshl_add_u32 v52, v3, 6, v52\nv_and_b32 v53, 3, v2\nv_lshl_add_u32 v52, v53, 4, v52')
a('s_mul_i32 s47, s6, 98304\ns_lshl_b32 s44, s3, 11\ns_add_u32 s47, s47, s44\ns_lshl_b32 s44, s5, 8\ns_add_u32 s47, s47, s44')
spoll([(48, 16, 46, 0)], 16); stamp(5)
for t in range(2):
    for s in range(4): a(f's_add_u32 s44, s47, {P1 + s*S + t*49152}\nbuffer_load_dwordx4 {vr(20 + 16*t + 4*s)}, v52, s[8:11], s44 offen sc1')
X = [(52, 56), (20, 24)]
for t in range(2):
    if t == 0: a('s_waitcnt vmcnt(8)')
    madd(X[t], XR + 4*t, True)
    for s in range(4):
        a(f's_waitcnt vmcnt({7 - 4*t - s})'); madd(X[t], 20 + 16*t + 4*s)
for t in range(2): packx(XR + 4*t, X[t]); madd(X[t], XR + 4*t, True)
stamp(6)
ln_tail(X, 28, lambda: dma(0)); stamp(7)
dma(1)
a('s_cmp_ge_u32 s3, 6\ns_cbranch_scc1 k2_v')
gemm(12, 2, W2K, 20, 36, False, HL, 12288); stamp(8)
for t in range(2):
    for p in range(2):
        c = 36 + 4*(p*2+t); a(f'v_cvt_pk_bf16_f32 v{52+4*t+2*p}, v{c}, v{c+1}\nv_cvt_pk_bf16_f32 v{53+4*t+2*p}, v{c+2}, v{c+3}')
a('s_cmp_ge_u32 s3, 3\ns_cbranch_scc1 k2_k')
for t in range(2): a(f'ds_write_b128 v5, {vr(52+4*t)} offset:{QL + t*3072}')
a('s_branch k3'); a.label('k2_k')
a(f's_mul_i32 s46, s7, 12\ns_add_u32 s46, s46, s6\ns_mul_i32 s44, s46, 6144\ns_lshl_b32 s45, s36, 10\ns_add_u32 s44, s44, s45\ns_add_u32 s44, s44, {KF}')
for t in range(2): a(f'buffer_store_dwordx4 {vr(52+4*t)}, v4, s[8:11], s44 offen offset:{t*3072} sc1')
a(f's_lshl_b32 s46, s46, 7\ns_lshl_b32 s45, s36, 2\ns_add_u32 s46, s46, s45\ns_add_u32 s46, s46, {F2K}')
publish(46)
a('s_branch k3'); a.label('k2_v'); a.hist = []
gemm(12, 1, W2V, 20, 36, True, HL, 12288); stamp(8)
for t in range(2):
    c = 36 + 4*t; a(f'v_cvt_pk_bf16_f32 v{52+2*t}, v{c}, v{c+1}\nv_cvt_pk_bf16_f32 v{53+2*t}, v{c+2}, v{c+3}')
a(f's_mul_i32 s46, s7, 6\ns_add_u32 s46, s46, s35\ns_mul_i32 s44, s46, 12\ns_add_u32 s44, s44, s6\ns_lshl_b32 s44, s44, 10\ns_add_u32 s44, s44, {VF}')
a(f'buffer_store_dwordx4 {vr(52)}, v4, s[8:11], s44 offen sc1')
a(f's_lshl_b32 s46, s46, 7\ns_lshl_b32 s45, s6, 2\ns_add_u32 s46, s46, s45\ns_add_u32 s46, s46, {F2V}')
publish(46)
a.label('k3'); a.fence(); stamp(9)
a(f's_mul_i32 s46, s39, 6144\ns_add_u32 s46, s46, {WP}')
WPR = [144 + 4*i for i in range(6)]
lin_loads(WPR, 46)
a(f's_sub_u32 s39, s65, {W2P - W1P}')
W1R = [96 + 4*i for i in range(12)] + [20 + 4*i for i in range(12)]
a('s_lshl_b32 s35, s69, 1\ns_add_u32 s35, s35, s3\ns_sub_u32 s44, s35, 12\ns_cmp_ge_u32 s35, 12\ns_cselect_b32 s35, s44, s35')
a('s_min_u32 s44, s3, 5\ns_add_u32 s69, s69, s44\ns_sub_u32 s44, s69, 6\ns_cmp_ge_u32 s69, 6\ns_cselect_b32 s69, s44, s69')
a(f's_mul_i32 s46, s7, 12\ns_add_u32 s46, s46, s35\ns_mul_i32 s36, s46, 6144\ns_add_u32 s36, s36, {KF}\ns_lshl_b32 s46, s46, 7\ns_add_u32 s46, s46, {F2K}')
a(f's_mul_i32 s47, s7, 6\ns_add_u32 s47, s47, s69\ns_mul_i32 s37, s47, 12288\ns_add_u32 s37, s37, {VF}\ns_lshl_b32 s47, s47, 7\ns_add_u32 s47, s47, {F2V}')
a('s_waitcnt lgkmcnt(0)\ns_barrier')
K, Q, SA, T, V = 20, 44, 68, 84, 96
for i in range(6): a(f'ds_read_b128 {vr(Q + 4*i)}, v4 offset:{QL + i*1024}')
spoll([(48, 4, 46, 0)], 3); stamp(10)
lin_loads([K + 4*i for i in range(6)], 36)
a(f's_mov_b32 s64, {hex(f2u(SC))}\ns_waitcnt lgkmcnt(0)')
for tau in range(2):
    a(f's_waitcnt vmcnt({3*(1-tau)})')
    for i in range(3):
        for u in range(2):
            c = vr(SA + 4*(u*2+tau)); a(f'{MF} {c}, {vr(K + 4*(tau*3+i))}, {vr(Q + 4*(u*3+i))}, {c if i else 0}')
stamp(11)
a('s_cmp_ge_u32 s3, 6\ns_cbranch_scc1 k3_b')
spoll([(48, 8, 47, 0), (56, 4, 47, 32)], 12, [(47, 12)])
lin_loads([V + 4*i for i in range(12)], 37); a.label('k3_b'); a('s_nop 7')
M = 92
for u in range(2):
    e = SA + 8*u
    a(f'v_max3_f32 v{M+u}, v{e}, v{e+1}, v{e+2}\nv_max3_f32 v{M+u}, v{M+u}, v{e+3}, v{e+4}\nv_max3_f32 v{M+u}, v{M+u}, v{e+5}, v{e+6}\nv_max_f32 v{M+u}, v{M+u}, v{e+7}')
xred_write(M, 2, T, 'v_max_f32', MX)
a('s_lshl_b32 s44, s35, 11\nv_add_u32 v10, s44, v4\ns_waitcnt lgkmcnt(0)\ns_barrier')
xred_read(M, 2, T, 'v_max_f32', MX)
for u in range(2): a(f'v_mul_f32 v{M+u}, s64, v{M+u}')
for u in range(2):
    e = SA + 8*u
    for k in range(8): a(f'v_fma_f32 v{e+k}, v{e+k}, s64, -v{M+u}')
    for k in range(8): a(f'v_exp_f32 v{e+k}, v{e+k}')
    for k in range(4): a(f'v_cvt_pk_bf16_f32 v{T+4*u+k}, v{e+2*k}, v{e+2*k+1}')
    a(f'ds_write_b128 v10, {vr(T+4*u)} offset:{PL + u*1024}')
    a(f'v_pk_add_f32 {vr(e,2)}, {vr(e,2)}, {vr(e+2,2)}\nv_pk_add_f32 {vr(e+4,2)}, {vr(e+4,2)}, {vr(e+6,2)}\nv_pk_add_f32 {vr(e,2)}, {vr(e,2)}, {vr(e+4,2)}\nv_add_f32 v{M+2+u}, v{e}, v{e+1}')
xred_write(M+2, 2, SA, 'v_add_f32', SM)
a('s_cmp_lt_u32 s3, 6\ns_cbranch_scc1 k3_c')
lin_loads(W1R[:8], 39); a.label('k3_c')
a('s_waitcnt lgkmcnt(0)\ns_barrier'); stamp(12)
W1R = [96 + 4*i for i in range(12)] + [20 + 4*i for i in range(12)]
a('s_cmp_lt_u32 s3, 6\ns_cbranch_scc1 k3_pv')
lin_loads(W1R[8:], 39, 8)
a('s_branch k3_o'); a.label('k3_pv')
PB = [20 + 4*(i % 12) for i in range(24)]
OA = 68
for i in range(12): a(f'ds_read_b128 {vr(PB[i])}, v4 offset:{PL + i*1024}')
for kb in range(12):
    nrd = min(24, 12 + 2*max(0, kb - 1))
    a(f's_waitcnt vmcnt({11 - kb}) lgkmcnt({nrd - 2*kb - 2})')
    for u in range(2):
        c = vr(OA + 4*u); a(f'{MF} {c}, {vr(V + 4*kb)}, {vr(PB[2*kb+u])}, {c if kb else 0}')
    if kb >= 1:
        for i in range(nrd, min(24, nrd + 2)): a(f'ds_read_b128 {vr(PB[i])}, v4 offset:{PL + i*1024}')
a('s_lshr_b32 s44, s69, 1\ns_lshl_b32 s44, s44, 10\ns_and_b32 s45, s69, 1\ns_lshl_b32 s45, s45, 3\ns_add_u32 s44, s44, s45\nv_add_u32 v10, s44, v4')
xred_read(M, 2, T, 'v_add_f32', SM)
for u in range(2): a(f'v_rcp_f32 v{M+u}, v{M+u}')
for u in range(2):
    c = OA + 4*u
    for r in range(4): a(f'v_mul_f32 v{c+r}, v{c+r}, v{M+u}')
    a(f'v_cvt_pk_bf16_f32 v{c}, v{c}, v{c+1}\nv_cvt_pk_bf16_f32 v{c+1}, v{c+2}, v{c+3}\nds_write_b64 v10, {vr(c,2)} offset:{OL + u*3072}')
a('s_waitcnt lgkmcnt(0)'); a.label('k3_o')
a('s_barrier'); stamp(13)
a('s_setprio 2')
def rdo(n): a(f'ds_read_b128 {vr(84 + 4*(n%3))}, v4 offset:{OL + (n&1)*3072 + (n>>1)*1024}')
for n in range(3): rdo(n)
for n in range(6):
    a(f's_waitcnt lgkmcnt({min(2, 5-n)})')
    for f in range(2):
        c = vr(68 + 4*(f*2 + (n&1))); a(f'{MF} {c}, {vr(WPR[(n>>1)*2+f])}, {vr(84 + 4*(n%3))}, {c if n > 1 else 0}')
    if n + 3 < 6: rdo(n + 3)
X = [(68, 76), (72, 80)]
a(f's_mul_i32 s44, s4, {S}\ns_add_u32 s36, s38, s44\ns_add_u32 s44, s36, {P2}\ns_add_u32 s45, s44, 12288')
a(f's_mul_i32 s37, s30, 12\ns_add_u32 s37, s37, s3\ns_lshl_b32 s37, s37, 7\ns_add_u32 s46, s37, {F3}\ns_lshl_b32 s47, s4, 2\ns_add_u32 s47, s47, s46')
for t in range(2):
    packx(84 + 4*t, X[t]); a(f'buffer_store_dwordx4 {vr(84+4*t)}, v4, s[8:11], s{44+t} offen sc1')
publish(47); stamp(14)
a('s_setprio 0\ns_cmp_ge_u32 s3, 6\ns_cbranch_scc1 k4_h')
lin_loads(W1R[:12], 39); a.label('k4_h')
def gather3(base):
    for t in range(2):
        for s in range(1, 4):
            a(f's_add_u32 s44, s4, {s}\ns_and_b32 s44, s44, 3\ns_mul_i32 s44, s44, {S}\ns_add_u32 s44, s44, s38\ns_add_u32 s44, s44, {base + t*12288}')
            a(f'buffer_load_dwordx4 {vr(144 + 12*t + 4*(s-1))}, v4, s[8:11], s44 offen sc1')
    for t in range(2):
        madd(X[t], XR + 4*t)
        for s in range(3):
            a(f's_waitcnt vmcnt({5 - 3*t - s})'); madd(X[t], 144 + 12*t + 4*s)
mk_sel(84); mk_ar(92)
spoll([(48, 4, 46, 0)], 4); stamp(15)
gather3(P2)
for t in range(2): packx(XR + 4*t, X[t]); madd(X[t], XR + 4*t, True)
stamp(16)
def w1b():
    a('s_cmp_ge_u32 s3, 6\ns_cbranch_scc1 k4_i')
    lin_loads(W1R[12:], 39, 12); a.label('k4_i')
ln_tail(X, 144, w1b); stamp(17)
gemm(12, 2, W1R, 144, 68, False, HL, 12288, vm=lambda k: (22 - 2*k + 2*min(k, NL)) if k >= 6 else 63, post=lambda k: lin_loads(W1R[2*k:2*k+2], 65, 2*k) if k < NL else None)
a(f's_lshl_b32 s44, s3, 13\nv_add_u32 v11, s44, v4\nv_add_u32 v11, {EX}, v11')
for i in range(8): a(f'ds_read_b128 {vr(W1R[16+i])}, v11 offset:{1024*i}')
stamp(18)
ga = -2 * math.sqrt(2 / math.pi) * math.log2(math.e)
a(f'v_mov_b32 v11, {hex(f2u(ga * 0.044715))}\nv_mov_b32 v10, {hex(f2u(ga))}')
for t in range(2):
    e = [vr(68 + 4*(p*2+t) + r, 2) for p in range(2) for r in (0, 2)]
    T = 144 + 8*t
    tt = [vr(T + 2*k, 2) for k in range(4)]
    for y, x in zip(tt, e): a(f'v_pk_mul_f32 {y}, {x}, {x}')
    for y, x in zip(tt, e): a(f'v_pk_fma_f32 {y}, {y}, v[10:11], v[10:11] op_sel:[0,1,0] op_sel_hi:[1,1,0]')
    for y, x in zip(tt, e): a(f'v_pk_mul_f32 {y}, {y}, {x}')
    for k in range(8): a(f'v_exp_f32 v{T+k}, v{T+k}')
    for y, x in zip(tt, e): a(f'v_pk_add_f32 {y}, {y}, 1.0 op_sel_hi:[1,0]')
    for k in range(8): a(f'v_rcp_f32 v{T+k}, v{T+k}')
    for y, x in zip(tt, e): a(f'v_pk_mul_f32 {y}, {y}, {x}')
    for k in range(4): a(f'v_cvt_pk_bf16_f32 v{T+k}, v{T+2*k}, v{T+2*k+1}')
    a(f'ds_write_b128 v5, {vr(T)} offset:{GL + t*12288}')
a('s_waitcnt lgkmcnt(0)\ns_barrier'); stamp(19)
def w2post(n):
    if NL + n < 8: lin_loads(W1R[2*(NL+n):2*(NL+n)+2], 65, 2*(NL+n))
w2post(0)
gemm(12, 2, W1R, 144, 68, False, GL, 12288, vm=lambda n: 63 if n < 4 else 2*min(8, NL+n+1) - 2*(n-4) - 2, post=lambda n: w2post(n+1), order=[8,9,10,11,0,1,2,3,4,5,6,7])
stamp(20)
a(f's_add_u32 s46, s37, {F4}\ns_lshl_b32 s47, s4, 2\ns_add_u32 s47, s47, s46')
sdiv(64, 3, 3)
a('s_cmp_eq_u32 s64, s4\ns_cbranch_scc1 k5_own')
a(f's_add_u32 s44, s36, {P3}\ns_add_u32 s45, s44, 12288')
for t in range(2):
    packx(84 + 4*t, X[t]); a(f'buffer_store_dwordx4 {vr(84+4*t)}, v4, s[8:11], s{44+t} offen sc1')
publish(47); finish(21)
a.label('k5_own'); a.fence()
publish(47)
spoll([(48, 4, 46, 0)], 4); stamp(21)
gather3(P3)
for t in range(2):
    packx(84 + 4*t, X[t]); a(f'buffer_store_dwordx4 {vr(84+4*t)}, v0, s[24:27], s{33+t} offen')
l = L()
a(f's_cmp_lg_u32 s2, {NRP}\ns_cbranch_scc1 {l}\ns_cmp_lg_u32 s3, 0\ns_cbranch_scc1 {l}\ns_mov_b32 s47, {EPO}')
publish(47); a.label(l)
finish(22)
a.label('repack'); a.hist = []
a('s_mul_i32 s4, s2, 12\ns_add_u32 s4, s4, s3\ns_waitcnt lgkmcnt(0)')
a(f's_add_u32 s46, s8, {EPO}\ns_addc_u32 s47, s9, 0\ns_load_dword s43, s[46:47], 0')
if CPF:
    a('s_getpc_b64 s[64:65]'); a.label('pcref')
    a(f's_sub_u32 s64, s64, pcref-{NAME}\ns_subb_u32 s65, s65, 0\ns_lshr_b32 s76, s2, 3\ns_mul_i32 s77, s3, 7\ns_add_u32 s76, s76, s77\ns_lshl_b32 s76, s76, 6')
    for i in range(4): a(f's_min_u32 s77, s76, repack-{NAME}\ns_load_dword s{78+i}, s[64:65], s77\ns_add_u32 s76, s76, {84*64}')
a('s_cmp_ge_u32 s4, 648\ns_cbranch_scc1 rp4\ns_cmp_ge_u32 s4, 288\ns_cbranch_scc1 rp2')
for which in (0, 1):
    if which == 0: a('s_cmp_ge_u32 s4, 144\ns_cbranch_scc1 rp1')
    else: a.label('rp1'); a('s_sub_u32 s4, s4, 144')
    ld, w = (2304, 3) if which == 0 else (3072, 4)
    srd(12, 54 if which == 0 else 58, 884736 if which == 0 else S)
    sdivmod(5, 6, 4, 12)
    a(f's_mul_i32 s44, s6, 11\ns_lshr_b32 s44, s44, 5\ns_mul_i32 s44, s44, 72\ns_lshl_b32 s45, s6, 3\ns_add_u32 s44, s44, s45\ns_mul_i32 s44, s44, {ld}\ns_mul_i32 s45, s5, {64*w}\ns_add_u32 s44, s44, s45')
    a(f'v_mul_u32_u24 v10, {24*ld}, v3\nv_mul_u32_u24 v11, {4*w}, v2\nv_add_u32 v10, v10, v11')
    for j in range(8): a(f'buffer_load_dwordx{w} {vr(16 + 4*j, w)}, v10, s[12:15], s44 offen\ns_add_u32 s44, s44, {ld}')
    a(f's_lshl_b32 s47, s5, 7\ns_lshl_b32 s45, s6, 2\ns_add_u32 s47, s47, s45\ns_add_u32 s47, s47, {FRQ if which == 0 else FR1}')
    if which == 0:
        a(f's_and_b32 s28, s5, 3\ns_mul_i32 s28, s28, 6\ns_lshr_b32 s29, s5, 2\ns_mul_i32 s44, s29, 3\ns_add_u32 s44, s44, s28\ns_mul_i32 s44, s44, 24576\ns_lshl_b32 s45, s6, 11\ns_add_u32 s44, s44, s45')
        a(f's_mul_i32 s30, s28, 12288\ns_lshl_b32 s45, s6, 10\ns_add_u32 s30, s30, s45\ns_add_u32 s30, s30, {24*24576}')
        a(f's_mov_b32 s33, 12288\ns_cmp_eq_u32 s29, 2\ns_cselect_b32 s44, s30, s44\ns_cselect_b32 s30, s33, 1024\ns_cselect_b32 s31, s33, 23552\ns_add_u32 s44, s44, {WQ}')
    else:
        a(f's_mul_i32 s44, s5, 98304\ns_lshl_b32 s45, s6, 11\ns_add_u32 s44, s44, s45\ns_add_u32 s44, s44, {W1P}\ns_mov_b32 s30, 1024\ns_mov_b32 s31, 23552')
    a('s_waitcnt vmcnt(0) lgkmcnt(0)\ns_add_u32 s43, s43, 1')
    perms(16, 4, w, 48)
    for f in range(2*w): a(f'buffer_store_dwordx4 {vr(48 + 4*f)}, v4, s[8:11], s44 offen sc1\ns_add_u32 s44, s44, s{30 + (f&1)}')
    publish(47); a('s_branch pf')
a.label('rp2'); a.hist = []
for which in (0, 1):
    if which == 0: a('s_cmp_ge_u32 s4, 360\ns_cbranch_scc1 rp3\ns_sub_u32 s4, s4, 288')
    else: a.label('rp3'); a('s_sub_u32 s4, s4, 360')
    srd(12, 56 if which == 0 else 60, 294912 if which == 0 else S)
    sdivmod(6, 5, 4, 12)
    scol(28, 5)
    a(f'v_lshrrev_b32 v10, 2, v2\nv_mul_u32_u24 v10, 48, v10\nv_and_b32 v11, 3, v2\nv_lshl_add_u32 v10, v11, 2, v10\nv_mul_u32_u24 v11, {(24 if which == 0 else 32)*768}, v3\nv_add3_u32 v10, v10, v11, s28')
    for b in range(2):
        a(f's_lshl_b32 s29, s6, 1\ns_add_u32 s29, s29, {b}')
        if which == 0:
            sdivmod(30, 31, 29, 3)
            a(f's_mul_i32 s46, s30, 96\ns_lshl_b32 s45, s31, 1\ns_add_u32 s46, s46, s45\ns_mul_i32 s{32+b}, s30, 12\ns_add_u32 s{32+b}, s{32+b}, s5\ns_mul_i32 s{32+b}, s{32+b}, 6144\ns_lshl_b32 s45, s31, 11\ns_add_u32 s{32+b}, s{32+b}, s45\ns_add_u32 s{32+b}, s{32+b}, {WP}')
        else:
            sdivmod(30, 31, 29, 12)
            a(f's_lshr_b32 s46, s29, 2\ns_lshl_b32 s46, s46, 7\ns_and_b32 s45, s29, 3\ns_lshl_b32 s45, s45, 1\ns_add_u32 s46, s46, s45\ns_mul_i32 s{32+b}, s30, 12\ns_add_u32 s{32+b}, s{32+b}, s5\ns_mul_i32 s{32+b}, s{32+b}, 24576\ns_lshl_b32 s45, s31, 11\ns_add_u32 s{32+b}, s{32+b}, s45\ns_add_u32 s{32+b}, s{32+b}, {W2P}')
        a('s_mul_i32 s46, s46, 768')
        for j in range(8):
            row = (6 if which == 0 else 8)*(j&3) + (j>>2)
            a(f's_add_u32 s44, s46, {row*768}\nbuffer_load_dword v{16 + 8*b + j}, v10, s[12:15], s44 offen')
    a(f's_lshl_b32 s47, s5, 7\ns_lshl_b32 s45, s6, 2\ns_add_u32 s47, s47, s45\ns_add_u32 s47, s47, {FRP if which == 0 else FR2}')
    a('s_waitcnt vmcnt(0) lgkmcnt(0)\ns_add_u32 s43, s43, 1')
    for b in range(2):
        perms(16 + 8*b, 1, 1, 32 + 8*b)
        for f in range(2): a(f'buffer_store_dwordx4 {vr(32 + 8*b + 4*f)}, v4, s[8:11], s{32+b} offen offset:{f*1024} sc1')
    publish(47); a('s_branch pf')
a.label('rp4'); a('s_waitcnt lgkmcnt(0)\ns_add_u32 s43, s43, 1')
a.label('pf'); a.fence(); stamp(1)
a(f's_lshr_b32 s4, s2, 3\ns_mul_i32 s5, s3, 7\ns_add_u32 s4, s4, s5\nv_mul_u32_u24 v4, {TS}, v1\ns_mov_b32 s7, 48\ns_cmp_ge_u32 s4, 48\ns_cbranch_scc1 ' + ('pf_t' if TLB else 'pf_n'))
a.label('pf_l')
sdivmod(5, 6, 4, 6)
a(f's_cmp_ge_u32 s6, 3\ns_cselect_b32 s6, 4, 0\ns_add_u32 s46, s5, s6')
sdiv(5, 4, 3)
a(f's_cmp_ge_u32 s4, 24\ns_cselect_b32 s46, s5, s46\ns_cselect_b32 s30, 30, 12\ns_lshl_b32 s46, s46, 7\ns_add_u32 s46, s46, {FRQ}\ns_mov_b32 s28, 0\ns_mov_b32 s29, 11\ns_cmp_lt_u32 s4, 36\ns_cbranch_scc1 pf_go')
a(f's_mul_i32 s5, s5, 3\ns_sub_u32 s5, s4, s5\ns_lshl_b32 s46, s5, 9\ns_add_u32 s46, s46, {FRP}\ns_mov_b32 s28, 128\ns_mov_b32 s29, 5\ns_mov_b32 s30, 42\ns_cmp_lt_u32 s4, 48\ns_cbranch_scc1 pf_go')
a(f's_lshr_b32 s46, s4, 2\ns_lshl_b32 s46, s46, 7\ns_add_u32 s46, s46, {FR1 - 12*128}\ns_mov_b32 s28, 0\ns_mov_b32 s29, 11\ns_mov_b32 s30, 72\ns_cmp_lt_u32 s4, 96\ns_cbranch_scc1 pf_go')
sdivmod(5, 6, 4, 12)
a(f's_lshl_b32 s46, s6, 7\ns_mul_i32 s5, s5, 24\ns_add_u32 s46, s46, s5\ns_add_u32 s46, s46, {FR2 - 8*24}\ns_mov_b32 s29, 5\ns_mov_b32 s30, 120')
a.label('pf_go')
if HY: a('s_cmp_ge_u32 s4, s30\ns_cselect_b32 s30, 1, 0\ns_and_b32 s31, s2, 1\ns_cmp_lg_u32 s30, s31\ns_cbranch_scc1 pf_n')
a('v_min_u32 v10, s29, v2\nv_lshl_add_u32 v10, v10, 2, s46\nv_mad_u32_u24 v10, v3, s28, v10')
poll(10, 0x400, 'the_end')
a(f's_mul_i32 s44, s4, 24576\ns_add_u32 s44, s44, {WQ}')
for i in range(24576 // (64*TS)): a(f'buffer_load_dword v{16+i}, v4, s[8:11], s44 offen sc1\ns_add_u32 s44, s44, {64*TS}\ns_waitcnt vmcnt(0)')
a.label('pf_n')
if THR:
    a(f's_cmp_lg_u32 s7, 48\ns_cbranch_scc1 pf_m\ns_min_u32 s46, s4, 71\ns_lshl_b32 s46, s46, 7\ns_add_u32 s46, s46, {F1}\nv_lshl_add_u32 v10, v2, 2, s46')
    poll(10, 0x40); a.label('pf_m')
a(f's_cmp_ge_u32 s3, {NW}\ns_cbranch_scc1 the_end\ns_add_u32 s4, s4, s7\ns_mov_b32 s7, {7*NW}\ns_cmp_lt_u32 s4, 144\ns_cbranch_scc1 pf_l\ns_waitcnt vmcnt(0)')
finish(2)
a.label('the_end'); a('s_endpgm')
if TLB:
    a.label('pf_t'); srd(24, 62, S)
    a(f'v_min_u32 v10, 8, v1\nv_lshlrev_b32 v10, 16, v10\ns_sub_u32 s44, s4, 48\ns_mul_i32 s44, s44, {S//2}\nbuffer_load_dword v16, v10, s[8:11], s44 offen sc1')
    a(f'v_min_u32 v11, 17, v1\nv_lshlrev_b32 v11, 16, v11\nbuffer_load_dword v17, v11, s[24:27], 0 offen sc1\nv_min_u32 v11, 3, v1\nv_lshlrev_b32 v11, 16, v11\ns_mov_b32 s44, {FLG + 64}\nbuffer_load_dword v18, v11, s[8:11], s44 offen sc1\ns_waitcnt vmcnt(0)\ns_endpgm')
hdr = open('standalone__video_videomae__vision.s.ref').read().split('; Override')[0]
out = hdr + f'; @launch grid=({NRP+192},1,1) block=(768,1,1) lds=163840\n.amdgcn_target "amdgcn-amd-amdhsa--gfx950"\n.text\n' + a.text() + f'''.section .rodata,"a"
.p2align 6
.amdhsa_kernel {NAME}
  .amdhsa_next_free_vgpr 168
  .amdhsa_next_free_sgpr 102
  .amdhsa_accum_offset 168
  .amdhsa_group_segment_fixed_size 0
  .amdhsa_kernarg_size 80
  .amdhsa_user_sgpr_count 2
  .amdhsa_user_sgpr_kernarg_segment_ptr 1
  .amdhsa_system_sgpr_workgroup_id_x 1
.end_amdhsa_kernel
'''
open(sys.argv[1], 'w').write(out)
```
